```python
import torch

def _softmax(x, axis=-1):
    return torch.softmax(x, dim=axis)
def _gelu(x):
    return torch.nn.functional.gelu(x, approximate="tanh")
def _silu(x):
    return torch.nn.functional.silu(x)
def _sigmoid(x):
    return torch.sigmoid(x)
def _layernorm(x, axis=-1, eps=1e-5):
    m = x.mean(dim=axis, keepdim=True)
    v = x.var(dim=axis, keepdim=True, unbiased=False)
    return (x - m) / torch.sqrt(v + eps)
def _scatter_add(tgt, idx, src, axis=0):
    return tgt.clone().index_add_(axis, idx, src)
def _segment_sum(src, seg, n):
    out = torch.zeros((n,) + src.shape[1:], dtype=src.dtype)
    return out.index_add_(0, seg, src)
def _pad(x, pw):
    flat = tuple(v for pair in reversed(pw) for v in pair)
    return torch.nn.functional.pad(x, flat)

kernel_name = 'parallel_sum__sliding_block_cached__swiglu_ffn__decode'

def setup_inputs():

    _w = (lambda a: (lambda t: t.to(torch.bfloat16) if t.is_floating_point() else t)(torch.as_tensor(a)))
    def _A_setup():
        B, Sq, D = 1, 1, 1024
        Hq, Hkv, Sk, Dh = 32, 4, 32768, 128
        assert Hq % Hkv == 0, (Hq, Hkv)
        return {
            "x": _w((lambda *s: torch.randn(*s, dtype=torch.bfloat16) * 0.05)(B, Sq, D)),
            "k_cache": _w((lambda *s: torch.randn(*s, dtype=torch.bfloat16) * 3.2)(B, Hkv, Sk, Dh)),
            "v_cache": _w((lambda *s: torch.randn(*s, dtype=torch.bfloat16) * 1.6)(B, Hkv, Sk, Dh)),
            "wq": _w((lambda *s: torch.randn(*s, dtype=torch.bfloat16) * 3.2)(D, Hq * Dh) * (D ** -0.5)),
            "wo": _w((lambda *s: torch.randn(*s, dtype=torch.bfloat16) * 1.6)(Hq * Dh, D) * ((Hq * Dh) ** -0.5)),
        }
    _A_in = _A_setup()

    def _B_setup():
        B, S, D, F = 1, 1, 1024, 3584
        return {
            "x": _w((lambda *s: torch.randn(*s, dtype=torch.bfloat16) * 0.05)(B, S, D)),
            "w_gate": _w((lambda *s: torch.randn(*s, dtype=torch.bfloat16) * 0.05)(D, F)),
            "w_up": _w((lambda *s: torch.randn(*s, dtype=torch.bfloat16) * 0.05)(D, F)),
            "w_down": _w((lambda *s: torch.randn(*s, dtype=torch.bfloat16) * 0.05)(F, D)),
        }
    _B_in = _B_setup()

    return {
        "A_x": _A_in["x"],
        "A_k_cache": _A_in["k_cache"],
        "A_v_cache": _A_in["v_cache"],
        "A_wq": _A_in["wq"],
        "A_wo": _A_in["wo"],
        "B_x": _B_in["x"],
        "B_w_gate": _B_in["w_gate"],
        "B_w_up": _B_in["w_up"],
        "B_w_down": _B_in["w_down"],
    }

def reference(A_x, A_k_cache, A_v_cache, A_wq, A_wo, B_x, B_w_gate, B_w_up, B_w_down):
    def _A_ref(x, k_cache, v_cache, wq, wo):
        B, Sq, D = x.shape
        Hq, Dh = 32, 128
        Hkv, Sk = k_cache.shape[1], k_cache.shape[2]
        W = min(4096, max(256, Sk // 4))
        rep = Hq // Hkv
        q = (lambda x, *d: x.permute(*d))((x @ wq).reshape(B, Sq, Hq, Dh), 0, 2, 1, 3)
        k = (lambda x, n, axis: torch.repeat_interleave(x, n, dim=axis))(k_cache[:, :, Sk - W:, :], rep, axis=1)
        v = (lambda x, n, axis: torch.repeat_interleave(x, n, dim=axis))(v_cache[:, :, Sk - W:, :], rep, axis=1)
        scores = torch.einsum("bhqd,bhkd->bhqk", q, k) * (Dh ** -0.5)
        p = _softmax(scores, axis=-1)
        o = torch.einsum("bhqk,bhkd->bhqd", p, v)
        return (lambda x, *d: x.permute(*d))(o, 0, 2, 1, 3).reshape(B, Sq, Hq * Dh) @ wo

    def _B_ref(x, w_gate, w_up, w_down):
        g = _silu(x @ w_gate)
        u = x @ w_up
        return (g * u) @ w_down

    x = A_x
    xn = _layernorm(x, axis=-1)
    return x + _A_ref(xn, A_k_cache, A_v_cache, A_wq, A_wo) + _B_ref(xn, B_w_gate, B_w_up, B_w_down)
```

```python
KN = "parallel_sum__sliding_block_cached__swiglu_ffn__decode"
class Asm:
    def __init__(self):
        self.L = []
    def __call__(self, s):
        for line in s.strip("\n").split("\n"):
            self.L.append(line)
    def header(self, grid, block, lds, kname=KN + "_kernel"):
        self(f"; @launch grid=({grid},1,1) block=({block},1,1) lds={lds}")
        self('.amdgcn_target "amdgcn-amd-amdhsa--gfx950"')
        self(".text"); self(f".globl {kname}"); self(".p2align 8"); self(f".type {kname},@function")
        self(f"{kname}:")
    def footer(self, nv, ns=96, acc=None, kname=KN + "_kernel"):
        if acc is None: acc = (nv + 3) // 4 * 4
        self('.section .rodata,"a"'); self(".p2align 6"); self(f".amdhsa_kernel {kname}")
        self(f"  .amdhsa_next_free_vgpr {nv}"); self(f"  .amdhsa_next_free_sgpr {ns}"); self(f"  .amdhsa_accum_offset {acc}")
        self("  .amdhsa_group_segment_fixed_size 0"); self("  .amdhsa_kernarg_size 96"); self("  .amdhsa_user_sgpr_count 2")
        self("  .amdhsa_user_sgpr_kernarg_segment_ptr 1"); self("  .amdhsa_system_sgpr_workgroup_id_x 1"); self(".end_amdhsa_kernel")
    def write(self, name):
        open(name, "w").write("\n".join(self.L) + "\n")
```

```python
import re
TRANS = ("v_exp_f32", "v_log_f32", "v_rcp_f32", "v_rsq_f32", "v_sqrt_f32", "v_sin_f32", "v_cos_f32", "v_rcp_iflag_f32")
def regs(tok):
    tok = tok.strip()
    neg = tok.lstrip("-")
    m = re.match(r"^(?:abs\()?\|?([vsa])(\d+)\|?\)?$", neg)
    if m: return {(m.group(1), int(m.group(2)))}
    m = re.match(r"^([vsa])\[(\d+):(\d+)\]$", neg)
    if m: return {(m.group(1), i) for i in range(int(m.group(2)), int(m.group(3)) + 1)}
    if neg in ("vcc", "vcc_lo", "vcc_hi"): return {("s", "vcc")}
    if neg in ("exec", "exec_lo", "exec_hi"): return {("s", "exec")}
    if neg == "m0": return {("s", "m0")}
    return set()
class Ins:
    def __init__(self, line):
        self.line = line
        s = line.split(";")[0].strip()
        self.op = s.split()[0] if s else ""
        rest = s[len(self.op):].strip()
        ops = [o.strip() for o in re.split(r",(?![^\[]*\])", rest)] if rest else []
        mods = ""
        if ops:
            parts = ops[-1].split(None, 1)
            if len(parts) > 1: ops[-1] = parts[0]; mods = parts[1]
        self.ops = ops; self.mods = mods
        op = self.op
        self.mfma = op.startswith("v_mfma")
        self.valu = op.startswith("v_") and not self.mfma
        self.trans = any(op.startswith(t) for t in TRANS)
        self.dpp = self.valu and bool(re.search(r"row_|quad_perm|wave_", mods))
        self.perml = op.startswith("v_permlane")
        self.rdlane = op.startswith("v_readlane") or op.startswith("v_readfirstlane")
        self.wrlane = op.startswith("v_writelane")
        self.vmem = op.startswith("buffer_") or op.startswith("global_") or op.startswith("flat_")
        self.ds = op.startswith("ds_")
        self.salu = op.startswith("s_") and not op.startswith(("s_load", "s_buffer_load", "s_memrealtime", "s_memtime", "s_atomic"))
        self.lds_dma = self.vmem and ("lds" in mods.split() or "_lds_" in op)
        R = [regs(o) for o in ops]
        self.w = set(); self.r = set()
        if self.vmem:
            if "store" in op or self.lds_dma or op in ("buffer_inv", "buffer_wbl2") or ("atomic" in op and "sc0" not in mods):
                for x in R: self.r |= x
            else:
                self.w |= R[0]
                for x in R[1:]: self.r |= x
            if self.lds_dma: self.r |= {("s", "m0")}
        elif self.ds:
            if op.startswith(("ds_read", "ds_bpermute", "ds_permute", "ds_swizzle")) or "_rtn" in op:
                self.w |= R[0]
                for x in R[1:]: self.r |= x
            else:
                for x in R: self.r |= x
        elif self.valu or self.mfma:
            if R:
                self.w |= R[0]
                for x in R[1:]: self.r |= x
            if self.perml: self.w |= R[1]; self.r |= R[0]
            if op.startswith(("v_fmac", "v_dot2c", "v_pk_fmac")) or self.wrlane or self.dpp: self.r |= R[0]
            if op.startswith(("v_add_co", "v_sub_co", "v_addc_co", "v_subb_co", "v_div_scale")): self.w |= R[1];
            if op.startswith("v_cmpx"): self.w |= {("s", "exec")}
        elif op.startswith("s_"):
            if op.startswith(("s_cmp", "s_bitcmp", "s_cbranch", "s_branch", "s_waitcnt", "s_nop", "s_sleep", "s_barrier", "s_endpgm", "s_setprio", "s_setpc")):
                for x in R: self.r |= x
            elif R:
                self.w |= R[0]
                for x in R[1:]: self.r |= x
                if "saveexec" in op: self.w |= {("s", "exec")}
        self.passes = 0
        if self.mfma:
            self.passes = 8 if "32x32" in op else (2 if "4x4" in op else 4)
            self.srcc = R[3] if len(R) > 3 else set()
            self.srcab = R[1] | R[2]
        self.wide_store = self.vmem and "store" in op and ("x3" in op or "x4" in op)
        self.store_data = (R[0] if op.startswith("buffer_") else (R[1] if len(R) > 1 else set())) if self.wide_store else set()
    def slots(self):
        if self.op == "s_nop": return int(self.ops[0], 0) + 1
        return 1
def vonly(s): return {x for x in s if x[0] in "va"}
def sonly(s): return {x for x in s if x[0] == "s"}
def need(p, c):
    n = 0
    if p.valu:
        if c.mfma and vonly(p.w) & c.r: n = max(n, 2)
        if c.dpp and vonly(p.w) & c.r: n = max(n, 2)
        if c.perml and vonly(p.w) & (c.r | c.w): n = max(n, 2)
        if c.rdlane and vonly(p.w) & c.r: n = max(n, 1)
        if p.trans and c.valu and not c.trans and vonly(p.w) & c.r: n = max(n, 1)
        if p.trans and (c.vmem or c.ds) and vonly(p.w) & c.r: n = max(n, 1)
        sw = sonly(p.w)
        if sw:
            if (c.valu or c.mfma) and sw & c.r: n = max(n, 4 if (c.rdlane or c.wrlane) else 2)
            if c.vmem and sw & c.r: n = max(n, 5)
            if ("s", "exec") in sw and (c.dpp): n = max(n, 5)
            if ("s", "exec") in sw and (c.mfma or c.perml or c.rdlane or c.wrlane): n = max(n, 4)
            if c.salu and sw & c.r: n = max(n, 1)
    if p.mfma:
        tab = {2: (2, 4, 5, 1), 4: (0, 6, 8, 3), 8: (0, 10, 12, 7)}[p.passes]
        if c.mfma:
            if p.w & c.srcab: n = max(n, tab[2])
            if p.w & c.srcc:
                n = max(n, tab[0] if (p.w == c.srcc and p.passes == c.passes) else tab[1])
            elif p.w & c.w: n = max(n, tab[1])
        elif c.valu or c.vmem or c.ds:
            if p.w & (c.r | c.w): n = max(n, tab[2])
        if c.valu and p.srcc & c.w: n = max(n, tab[3])
    if p.salu and ("s", "m0") in p.w and c.lds_dma: n = max(n, 1)
    if p.wide_store and p.store_data & c.w: n = max(n, 2)
    return n
def fix(lines):
    out = []; hist = []
    pos = 0; added = 0
    for line in lines:
        s = line.split(";")[0].strip()
        if not s or s.startswith(".") or s.endswith(":") or s.startswith("//"):
            out.append(line); continue
        c = Ins(line)
        req = 0
        for (p, ppos) in hist[-24:]:
            gap = pos - ppos - 1
            nd = need(p, c)
            if nd > gap: req = max(req, nd - gap)
        if c.op.startswith(("s_branch", "s_cbranch", "s_setpc", "s_swappc")):
            for (p, ppos) in hist[-24:]:
                gap = pos - ppos - 1
                worst = 0
                if p.mfma: worst = {2: 5, 4: 8, 8: 12}[p.passes]
                elif p.valu: worst = 5 if sonly(p.w) - {("s", "vcc")} else 2
                elif p.wide_store: worst = 2
                worst -= 1
                if worst > gap: req = max(req, worst - gap)
        while req > 0:
            k = min(req, 16)
            out.append(f"s_nop {k-1}"); pos += k; req -= k; added += 1
        out.append(line)
        hist.append((c, pos)); pos += c.slots()
        if c.op == "s_nop": hist.pop();
    return out
```

```python
import sys, argparse
from asmlib import *
import hazard

P = dict(
    stamps=0,
    pol="nt",
    dA=4,
    dG=5,
    dF=5,
    hoXG=3,
    hoA=2,
    spin=400000,
    prefetch=1,
    hsleep=2,
)
for a in sys.argv[2:]:
    k, v = a.split("=")
    P[k] = v if k == "pol" else int(v)
OUT = sys.argv[1]

EPA, QP, AP, ML, GP, OP, HINT, EPB, STAMP = 0x0, 0x800, 0x10000, 0x9000, 0x90000, 0xAC000, 0xEC000, 0xFC000, 0x200000
WS_USED = 0x300000
L_F1, L_F2, L_CQ, L_CG, L_CA1, L_CA2, L_CO, L_FH = 0, 16, 32, 36, 40, 44, 48, 52
L_OV, L_HV, L_MX, L_LX = 0x100, 0x180, 0x200, 0x280
L_REDQ, L_REDG, L_Q, L_K, L_V = 0x400, 0xC00, 0x1400, 0x2000, 0xA000
LDS_BYTES = 86016
DPPM = "row_mask:0xf bank_mask:0xf"
LOG2E = 0x3fb8aa3b
SCALE = 0x3db504f3

A = Asm()
A.header(256, 768, LDS_BYTES)
_uid = [0]
def lab(p):
    _uid[0] += 1
    return f"L_{p}_{_uid[0]}"
def stamp(i):
    if P["stamps"]:
        A(f"s_memrealtime s[{80+2*i}:{81+2*i}]")
def srd(d, base, size):
    A(f"s_mov_b32 s{d}, s{base}\ns_mov_b32 s{d+1}, s{base+1}\ns_mov_b32 s{d+2}, {size:#x}\ns_mov_b32 s{d+3}, 0x20000")
def tag_load():
    A(f"s_load_dword s31, s[26:27], {EPA}\ns_load_dword s57, s[26:27], {EPB}")
def get_tag():
    A("s_mul_i32 s31, s31, 0x9E3779B5\ns_mul_i32 s57, s57, 0x85EBCA6C\ns_add_u32 s31, s31, s57\ns_add_u32 s31, s31, 0x6A09E667")
def lds_wait(vaddr, off, val, vt, sleep=1):
    l = lab("lw"); e = lab("lwd")
    A(f"s_mov_b32 s60, {P['spin']*4}")
    A(f"{l}:\nds_read_b32 v{vt}, v{vaddr} offset:{off}\ns_waitcnt lgkmcnt(0)\nv_readfirstlane_b32 s61, v{vt}")
    A(f"s_cmp_ge_u32 s61, {val}\ns_cbranch_scc1 {e}")
    if sleep: A(f"s_sleep {sleep}")
    A(f"s_sub_u32 s60, s60, 1\ns_cmp_lg_u32 s60, 0\ns_cbranch_scc1 {l}\n{e}:")
def hint_wait(sbase_off, nd):
    l = lab("hw"); e = lab("hwd")
    A(f"s_add_u32 s62, s26, s{sbase_off}\ns_addc_u32 s63, s27, 0")
    A("s_and_b32 s59, s31, 0xffff\ns_mul_i32 s59, s59, 0x10001")
    A(f"s_mov_b32 s60, {P['spin']}")
    A(f"{l}:\ns_load_dwordx{nd} s[64:{63+nd}], s[62:63], 0 glc\ns_waitcnt lgkmcnt(0)")
    A("s_and_b64 s[56:57], s[64:65], s[66:67]\ns_or_b64 s[64:65], s[64:65], s[66:67]")
    for k in range(68, 64 + nd, 2):
        A(f"s_and_b64 s[56:57], s[56:57], s[{k}:{k+1}]\ns_or_b64 s[64:65], s[64:65], s[{k}:{k+1}]")
    A("s_and_b32 s56, s56, s57\ns_or_b32 s64, s64, s65\ns_xor_b32 s56, s56, s59\ns_xor_b32 s64, s64, s59\ns_or_b32 s56, s56, s64")
    A(f"s_cbranch_scc0 {e}")
    if P["hsleep"]: A(f"s_sleep {P['hsleep']}")
    A(f"s_sub_u32 s60, s60, 1\ns_cmp_lg_u32 s60, 0\ns_cbranch_scc1 {l}\n{e}:")
def tag_insert(vreg, n, vtag):
    for k in range(n):
        A(f"v_perm_b32 v{vreg+k}, v{vreg+k}, v{vtag}, s{52+(k&3)}")
def tag_sel_setup():
    for k in range(4):
        A(f"s_mov_b32 s{52+k}, {0x07060500+k:#x}")
def tag_check(bases, vt0, vt1, vacc, vtag):
    first = True
    for b in bases:
        A(f"v_perm_b32 v{vt0}, v{b+1}, v{b}, s50")
        A(f"v_perm_b32 v{vt1}, v{b+3}, v{b+2}, s51")
        if first:
            A(f"v_bitop3_b32 v{vacc}, v{vt0}, v{vt1}, v{vtag} bitop3:0x56")
            first = False
        else:
            A(f"v_bitop3_b32 v{vt0}, v{vt0}, v{vt1}, v{vtag} bitop3:0x56")
            A(f"v_or_b32 v{vacc}, v{vacc}, v{vt0}")
def chk_sel_setup():
    A("s_mov_b32 s50, 0x0c0c0400\ns_mov_b32 s51, 0x04000c0c")
def gather_loop(loads, bases, vt0, vt1, vacc, vtag, sleep=0):
    l = lab("gl"); e = lab("gld")
    A(f"s_mov_b32 s60, {P['spin']}")
    A(f"{l}:")
    for x in loads: A(x)
    A("s_waitcnt vmcnt(0)")
    tag_check(bases, vt0, vt1, vacc, vtag)
    A(f"v_cmp_ne_u32 vcc, 0, v{vacc}")
    A(f"s_and_b64 exec, exec, vcc\ns_cbranch_scc0 {e}")
    if sleep: A(f"s_sleep {sleep}")
    A(f"s_sub_u32 s60, s60, 1\ns_cmp_lg_u32 s60, 0\ns_cbranch_scc1 {l}\n{e}:")
    A("s_mov_b64 exec, -1")
def swapadd(v, t, which, op="v_add_f32"):
    A(f"v_mov_b32 v{t}, v{v}\nv_permlane{which}_swap_b32 v{t}, v{v}\n{op} v{v}, v{v}, v{t}")
def allsum(v, t):
    for m in ("quad_perm:[1,0,3,2]", "quad_perm:[2,3,0,1]", "row_half_mirror", "row_mirror"):
        A(f"v_add_f32_dpp v{v}, v{v}, v{v} {m} {DPPM}")
    swapadd(v, t, 16); swapadd(v, t, 32)
def bf16r(v):
    A(f"v_cvt_pk_bf16_f32 v{v}, v{v}, v{v}\nv_lshlrev_b32 v{v}, 16, v{v}")
def selectors(S, t0, t1, t2):
    A(f"v_and_b32 v{t0}, 1, v3\nv_cmp_eq_u32 vcc, 1, v{t0}")
    A(f"v_mov_b32 v{t0}, 0x0c0c0100\nv_mov_b32 v{t1}, 0x01000c0c\nv_cndmask_b32 v{t0}, v{t0}, v{t1}, vcc")
    A(f"v_mov_b32 v{t1}, 0x0c0c0302\nv_mov_b32 v{t2}, 0x03020c0c\nv_cndmask_b32 v{t1}, v{t1}, v{t2}, vcc")
    A(f"v_lshrrev_b32 v{t2}, 1, v3")
    for d in range(4):
        A(f"v_cmp_eq_u32 vcc, {d}, v{t2}")
        A(f"v_mov_b32 v{S+2*d}, 0x0c0c0c0c\nv_mov_b32 v{S+2*d+1}, 0x0c0c0c0c")
        A(f"v_cndmask_b32 v{S+2*d}, v{S+2*d}, v{t0}, vcc\nv_cndmask_b32 v{S+2*d+1}, v{S+2*d+1}, v{t1}, vcc")
def build_op(dst, xp, t, S):
    for d in range(4):
        A(f"v_perm_b32 v{dst+d}, v{xp+(t>>1)}, v{xp+(t>>1)}, v{S+2*d+(t&1)}")
def finish():
    if P["stamps"]:
        A("s_branch L_stamps")
    else:
        A("s_endpgm")

pol = P["pol"]
A("s_cmp_ge_u32 s2, 256\ns_cbranch_scc1 L_end")
A("s_load_dwordx16 s[4:19], s[0:1], 0\ns_load_dwordx8 s[20:27], s[0:1], 64")
if P["stamps"]:
    for i in range(1, 8): A(f"s_mov_b32 s{80+2*i}, 0")
stamp(0)
A("v_lshrrev_b32 v1, 6, v0\nv_and_b32 v0, 63, v0\nv_readfirstlane_b32 s3, v1")
A("s_and_b32 s28, s2, 7\ns_lshr_b32 s29, s2, 3")
A("v_lshrrev_b32 v2, 3, v0\nv_and_b32 v3, 7, v0\nv_mov_b32 v7, 0")
A("s_and_b32 s30, s3, 3\ns_lshr_b32 s44, s3, 2")
A("s_lshl_b32 s49, s28, 4\ns_lshr_b32 s45, s29, 1\ns_add_u32 s49, s49, s45")
A("s_cmp_eq_u32 s44, 2\ns_cbranch_scc1 L_G3")
A("s_cmp_eq_u32 s44, 1\ns_cbranch_scc1 L_G2")
A("s_setprio 3")
A("s_bitcmp1_b32 s29, 0\ns_cbranch_scc1 L_A")
W = 40
XP = 16
SEL = 104
OPB = 112
ACC = 120
A("s_mov_b32 s45, 0")
A("s_and_b32 s46, s49, 1\ns_lshl_b32 s46, s46, 9\ns_lshl_b32 s47, s30, 7\ns_add_u32 s48, s46, s47")
A("s_lshl_b32 s47, s48, 13\ns_lshr_b32 s46, s49, 1\ns_lshl_b32 s46, s46, 7\ns_add_u32 s47, s47, s46")
A("v_lshlrev_b32 v4, 17, v2\nv_lshl_add_u32 v4, v3, 4, v4")
A("v_lshlrev_b32 v5, 5, v0\nv_lshlrev_b32 v6, 5, v2\ns_lshl_b32 s46, s48, 1")
A("s_waitcnt lgkmcnt(0)")
srd(40, 4, 2048); srd(32, 10, 8 << 20)
def xloads():
    A("buffer_load_dwordx4 v[8:11], v5, s[40:43], 0 offen\nbuffer_load_dwordx4 v[12:15], v5, s[40:43], 0 offen offset:16")
    A(f"buffer_load_dwordx4 v[{XP}:{XP+3}], v6, s[40:43], s46 offen\nbuffer_load_dwordx4 v[{XP+4}:{XP+7}], v6, s[40:43], s46 offen offset:16")
tag_load()
xloads()
for t in range(16):
    if t == 8: A("s_waitcnt lgkmcnt(0)\ns_barrier")
    A(f"buffer_load_dwordx4 v[{W+4*t}:{W+4*t+3}], v4, s[32:35], s47 offen {pol}")
    if t < 15: A("s_add_u32 s47, s47, 8192")
A(f"s_lshl_b32 s58, s49, 8")
if QP: A(f"s_add_u32 s58, s58, {QP}")
A("v_and_b32 v1, 15, v0\nv_lshlrev_b32 v1, 12, v1\nv_bfe_u32 v5, v0, 4, 1\nv_lshl_add_u32 v1, v5, 8, v1")
A(f"s_lshr_b32 s59, s49, 5\ns_lshl_b32 s59, s59, 9\ns_and_b32 s46, s49, 31\ns_lshl_b32 s46, s46, 1\ns_add_u32 s59, s59, s46\ns_add_u32 s47, s59, {HINT+2048}")
A("s_mov_b32 s48, -1")
A("s_waitcnt vmcnt(16)")
A("s_branch L_XG")
A("L_G2:")
A("s_setprio 2")
A("s_mov_b32 s45, 1")
A("s_and_b32 s46, s29, 3\ns_lshl_b32 s46, s46, 8\ns_and_b32 s47, s30, 1\ns_lshl_b32 s47, s47, 7\ns_add_u32 s48, s46, s47")
A("s_mul_i32 s46, s28, 7\ns_lshr_b32 s47, s29, 2\ns_add_u32 s59, s46, s47")
A("s_mul_i32 s44, s48, 7168\ns_lshl_b32 s46, s59, 7\ns_add_u32 s44, s44, s46")
A(f"v_mul_u32_u24 v4, {16*7168}, v2\nv_lshl_add_u32 v4, v3, 4, v4")
A("v_lshlrev_b32 v5, 5, v0\nv_lshlrev_b32 v6, 5, v2\ns_lshl_b32 s46, s48, 1")
A("s_waitcnt lgkmcnt(0)")
srd(40, 4, 2048); srd(32, 16, 7 << 20)
A("s_cmp_ge_u32 s30, 2\ns_cselect_b32 s32, s18, s16\ns_cselect_b32 s33, s19, s17")
tag_load()
A("s_cmp_ge_u32 s29, 28\ns_cbranch_scc1 L_G2_none")
xloads()
A(f"s_lshl_b32 s58, s59, 2\ns_and_b32 s46, s29, 3\ns_add_u32 s58, s58, s46\ns_lshl_b32 s58, s58, 9\ns_add_u32 s58, s58, {GP}")
A("v_lshlrev_b32 v1, 11, v0\nv_bfe_u32 v5, v0, 2, 1\nv_lshlrev_b32 v5, 3, v5\nv_sub_u32 v1, v1, v5")
A(f"s_andn2_b32 s47, s29, 3\ns_lshl_b32 s47, s47, 11\ns_lshl_b32 s59, s28, 8\ns_add_u32 s47, s47, s59\ns_lshl_b32 s46, s46, 1\ns_add_u32 s47, s47, s46\ns_add_u32 s47, s47, {HINT+128+8}")
A("s_mov_b32 s48, 0xff")
A("s_waitcnt lgkmcnt(0)")
A("s_barrier")
A("s_waitcnt vmcnt(0)")
A("L_XG:")
stamp(1)
srd(36, 26, WS_USED)
for k in range(8):
    A(f"v_lshlrev_b32 v{24+2*k}, 16, v{8+k}\nv_and_b32 v{25+2*k}, 0xffff0000, v{8+k}")
for k in range(8):
    A(f"v_add_f32 v{8+k}, v{24+2*k}, v{25+2*k}")
for k in range(4): A(f"v_add_f32 v{8+k}, v{8+k}, v{12+k}")
A("v_add_f32 v8, v8, v10\nv_add_f32 v9, v9, v11\nv_add_f32 v8, v8, v9")
allsum(8, 9)
A("v_mul_f32 v8, 0x3a800000, v8")
for k in range(16): A(f"v_sub_f32 v{24+k}, v{24+k}, v8")
A("v_mul_f32 v10, v24, v24\nv_mul_f32 v11, v25, v25")
for k in range(2, 16): A(f"v_fmac_f32 v{10+(k&1)}, v{24+k}, v{24+k}")
A("v_add_f32 v10, v10, v11")
allsum(10, 9)
A("v_mul_f32 v10, 0x3a800000, v10")
bf16r(8); bf16r(10)
A("v_add_f32 v10, 0x3727c5ac, v10")
bf16r(10)
A("v_sqrt_f32 v10, v10")
bf16r(10)
A("v_rcp_f32 v10, v10")
for k in range(8):
    a, b = 24 + 2 * k, 25 + 2 * k
    A(f"v_lshlrev_b32 v{a}, 16, v{XP+k}\nv_and_b32 v{b}, 0xffff0000, v{XP+k}")
    A(f"v_sub_f32 v{a}, v{a}, v8\nv_sub_f32 v{b}, v{b}, v8")
    A(f"v_cvt_pk_bf16_f32 v{XP+k}, v{a}, v{b}")
    A(f"v_lshlrev_b32 v{a}, 16, v{XP+k}\nv_and_b32 v{b}, 0xffff0000, v{XP+k}")
    A(f"v_mul_f32 v{a}, v{a}, v10\nv_mul_f32 v{b}, v{b}, v10")
    A(f"v_cvt_pk_bf16_f32 v{XP+k}, v{a}, v{b}")
selectors(SEL, 8, 9, 10)
get_tag()
tag_sel_setup(); chk_sel_setup()
A("v_mov_b32 v11, s31")
A("s_lshl_b32 s46, s30, 2\ns_lshl_b32 s61, s45, 4\ns_add_u32 s46, s46, s61\nv_mov_b32 v12, s46")
A(f"s_lshl_b32 s46, s45, 11\ns_add_u32 s46, s46, {L_REDQ}")
A("v_lshrrev_b32 v8, 5, v0\nv_lshlrev_b32 v13, 8, v8\nv_lshl_add_u32 v13, v3, 5, v13\nv_bfe_u32 v9, v0, 4, 1\nv_lshl_add_u32 v13, v9, 4, v13")
A("s_lshl_b32 s61, s30, 9\ns_add_u32 s61, s61, s46\nv_add_u32 v13, s61, v13")
A("v_and_b32 v9, 15, v0\nv_lshlrev_b32 v9, 4, v9\nv_lshrrev_b32 v10, 4, v0\nv_lshl_add_u32 v14, v10, 9, v9\nv_add_u32 v14, s46, v14")
A("v_lshl_add_u32 v15, v8, 8, v9")
A("v_mov_b32 v5, 1")
stamp(2)
A("s_cmp_eq_u32 s45, 0\ns_cbranch_scc1 L_XG_mm")
A("s_lshl_b32 s46, s30, 2\nv_mov_b32 v6, s46")
lds_wait(6, L_F1, 1, 8)
stamp(3)
dG = P["dG"]
for t in range(16):
    if t >= dG: A(f"s_waitcnt vmcnt({dG-1})")
    A(f"buffer_load_dwordx4 v[{W+4*t}:{W+4*t+3}], v4, s[32:35], s44 offen {pol}")
    if t < 15: A("s_add_u32 s44, s44, 7168")
A("L_XG_mm:")
build_op(OPB, XP, 0, SEL)
for t in range(16):
    if t < 15: build_op(OPB + 4 * ((t + 1) & 1), XP, t + 1, SEL)
    A(f"s_waitcnt vmcnt({15-t})")
    if 15 - t == P["hoXG"]:
        A("ds_write_b32 v12, v5")
    o = OPB + 4 * (t & 1)
    A(f"v_mfma_f32_16x16x32_bf16 v[{ACC}:{ACC+3}], v[{o}:{o+3}], v[{W+4*t}:{W+4*t+3}], {'0' if t == 0 else f'v[{ACC}:{ACC+3}]'}")
stamp(4)
A("s_mov_b32 exec_lo, 0x00ff00ff\ns_mov_b32 exec_hi, 0xff00ff00")
A(f"ds_write_b128 v13, v[{ACC}:{ACC+3}]")
A("s_mov_b64 exec, 1")
A(f"s_lshl_b32 s46, s45, 2\ns_add_u32 s46, s46, {L_CQ}\nv_mov_b32 v6, s46")
A("s_waitcnt lgkmcnt(0)")
A("ds_add_rtn_u32 v8, v6, v5\ns_waitcnt lgkmcnt(0)\nv_readfirstlane_b32 s46, v8")
A("s_mov_b64 exec, -1")
A("s_cmp_eq_u32 s46, 3\ns_cbranch_scc0 L_XG_done")
A("ds_read_b128 v[24:27], v14\nds_read_b128 v[28:31], v14 offset:256\ns_waitcnt lgkmcnt(0)")
for k in range(4): A(f"v_add_f32 v{24+k}, v{24+k}, v{28+k}")
for k in range(4): swapadd(24 + k, 28 + k, 16)
A("s_mov_b32 exec_lo, 0xffff\ns_mov_b32 exec_hi, 0xffff")
A("s_cmp_eq_u32 s45, 1\ns_cbranch_scc1 L_XG_pub")
A("s_mov_b64 exec, -1")
for k in range(4): swapadd(24 + k, 28 + k, 32)
A("s_mov_b64 exec, 0xffff")
A("L_XG_pub:")
tag_insert(24, 4, 11)
A("buffer_store_dwordx4 v[24:27], v15, s[36:39], s58 offen sc1")
A("s_mov_b32 exec_lo, s48\ns_mov_b32 exec_hi, 0")
A("buffer_store_short v11, v1, s[36:39], s47 offen sc1")
A("s_mov_b64 exec, -1")
stamp(5)
A("s_cmp_eq_u32 s45, 1\ns_cbranch_scc1 L_HG")
A("s_branch L_H2")
A("L_XG_done:")
A("s_cmp_eq_u32 s45, 0\ns_cbranch_scc1 L_H2")
finish()
A("L_G2_none:")
A("s_waitcnt lgkmcnt(0)")
A("s_barrier")
srd(36, 26, WS_USED)
A("s_lshl_b32 s46, s30, 2\nv_mov_b32 v6, s46\nv_mov_b32 v5, 1")
lds_wait(6, L_F1, 1, 8)
A(f"ds_write_b32 v6, v5 offset:{L_F2}")
A("s_cmp_lg_u32 s30, 0\ns_cbranch_scc1 L_fin1")
get_tag()
chk_sel_setup()
A("v_mov_b32 v11, s31")
A("L_HG:")
A("s_lshl_b32 s44, s28, 3\ns_lshr_b32 s46, s29, 2\ns_add_u32 s44, s44, s46\ns_mul_i32 s44, s44, 56")
A("v_lshrrev_b32 v8, 2, v0\nv_min_u32 v8, 13, v8\nv_lshl_add_u32 v8, v8, 2, s44")
A("v_lshrrev_b32 v9, 6, v8\nv_and_b32 v8, 63, v8\nv_lshlrev_b32 v8, 2, v8\nv_lshl_add_u32 v8, v9, 11, v8\nv_and_b32 v9, 3, v0\nv_lshl_add_u32 v8, v9, 9, v8")
A(f"s_lshl_b32 s46, s2, 8\ns_add_u32 s46, s46, {HINT+128}\ns_lshr_b32 s59, s29, 2")
A("s_cmp_eq_u32 s59, 0\ns_cselect_b32 s61, 8, 0\ns_add_u32 s61, s61, s46\ns_add_u32 s62, s26, s61\ns_addc_u32 s63, s27, 0")
A("s_cmp_eq_u32 s59, 7\ns_cselect_b32 s61, 0, 8\ns_add_u32 s61, s61, s46\ns_add_u32 s56, s26, s61\ns_addc_u32 s57, s27, 0")
A("s_and_b32 s59, s31, 0xffff\ns_mul_i32 s59, s59, 0x10001")
A(f"s_mov_b32 s60, {P['spin']}")
A("L_hgw:\ns_load_dwordx2 s[64:65], s[62:63], 0 glc\ns_load_dwordx2 s[66:67], s[56:57], 0 glc\ns_waitcnt lgkmcnt(0)")
A("s_xor_b32 s64, s64, s59\ns_xor_b32 s65, s65, s59\ns_xor_b32 s66, s66, s59\ns_xor_b32 s67, s67, s59\ns_or_b64 s[64:65], s[64:65], s[66:67]")
A("s_cbranch_scc0 L_hgd\ns_sleep 2\ns_sub_u32 s60, s60, 1\ns_cmp_lg_u32 s60, 0\ns_cbranch_scc1 L_hgw\nL_hgd:")
stamp(6)
A(f"s_mov_b32 s46, {GP}")
gather_loop(["buffer_load_dwordx4 v[24:27], v8, s[36:39], s46 offen sc1",
             "buffer_load_dwordx4 v[28:31], v8, s[36:39], s46 offen offset:256 sc1"], [24, 28], 12, 13, 14, 11)
for m in ("quad_perm:[1,0,3,2]", "quad_perm:[2,3,0,1]"):
    for k in range(8): A(f"v_add_f32_dpp v{24+k}, v{24+k}, v{24+k} {m} {DPPM}")
A("v_cmp_eq_u32 vcc, 1, v9\nv_cndmask_b32 v24, v24, v25, vcc\nv_cndmask_b32 v28, v28, v29, vcc")
A("v_cmp_eq_u32 vcc, 2, v9\nv_cndmask_b32 v24, v24, v26, vcc\nv_cndmask_b32 v28, v28, v30, vcc")
A("v_cmp_eq_u32 vcc, 3, v9\nv_cndmask_b32 v24, v24, v27, vcc\nv_cndmask_b32 v28, v28, v31, vcc")
bf16r(24); bf16r(28)
A(f"v_mul_f32 v25, {(LOG2E ^ 0x80000000):#x}, v24\nv_exp_f32 v25, v25\nv_add_f32 v25, 1.0, v25\nv_rcp_f32 v25, v25\nv_mul_f32 v24, v24, v25")
bf16r(24)
A("v_mul_f32 v24, v24, v28\nv_cvt_pk_bf16_f32 v24, v24, v24")
A("v_lshlrev_b32 v8, 4, v3\nv_lshl_add_u32 v8, v2, 1, v8")
A(f"ds_write_b16 v8, v24 offset:{L_HV}")
A(f"v_mov_b32 v5, 1\ns_waitcnt lgkmcnt(0)\nds_write_b32 v7, v5 offset:{L_FH}")
stamp(7)
A("L_fin1:")
finish()
KR, VR = 40, 72
A("L_A:")
A("s_lshr_b32 s45, s49, 5\ns_and_b32 s46, s49, 31")
A(f"s_lshl_b32 s47, s45, 23\ns_lshl_b32 s48, s46, 15\ns_add_u32 s47, s47, s48\ns_lshl_b32 s48, s30, 13\ns_add_u32 s47, s47, s48\ns_add_u32 s47, s47, {28672*256}")
A("v_lshrrev_b32 v4, 4, v0\nv_and_b32 v5, 15, v0")
A("v_xor_b32 v6, v5, v4\nv_lshlrev_b32 v6, 4, v6\nv_lshl_add_u32 v8, v4, 8, v6")
A("v_xor_b32 v9, 64, v8\nv_xor_b32 v10, 128, v8\nv_xor_b32 v11, 192, v8")
A("v_lshlrev_b32 v12, 1, v4\nv_xor_b32 v12, v5, v12\nv_lshlrev_b32 v12, 4, v12\nv_lshl_add_u32 v12, v4, 8, v12\nv_xor_b32 v13, 128, v12")
A(f"s_add_u32 s44, s48, {L_K}")
A("s_waitcnt lgkmcnt(0)")
srd(32, 6, 32 << 20); srd(40, 8, 32 << 20)
tag_load()
dA = P["dA"]
n = 0
for mat, sr in ((0, 32), (1, 40)):
    for i in range(8):
        if i % 4 == 0:
            lb = (L_V - L_K) * mat + 4096 * (i // 4)
            A(f"s_add_u32 m0, s44, {lb}")
            A(f"s_add_u32 s48, s47, {4096*(i//4)}")
        if n == dA: A("s_waitcnt lgkmcnt(0)\ns_barrier")
        if n >= dA: A(f"s_waitcnt vmcnt({dA-1})")
        va = (8 + (i & 3)) if mat == 0 else (12 + (i & 1))
        A(f"buffer_load_dwordx4 v{va}, s[{sr}:{sr+3}], s48 offen offset:{1024*(i&3)} {pol} lds")
        n += 1
srd(36, 26, WS_USED)
A("v_lshl_add_u32 v8, v5, 8, v6\nv_add_u32 v8, s44, v8")
A("v_xor_b32 v9, 64, v8\nv_xor_b32 v10, 128, v8\nv_xor_b32 v11, 192, v8")
for T in range(2):
    for t in range(4):
        r = KR + 16 * T + 4 * t
        A(f"ds_read_b128 v[{r}:{r+3}], v{8+t} offset:{4096*T}")
A("v_lshrrev_b32 v12, 2, v0")
A("v_and_b32 v13, 7, v12\nv_lshlrev_b32 v13, 1, v13\nv_bfe_u32 v14, v0, 1, 1\nv_xor_b32 v13, v13, v14\nv_lshlrev_b32 v13, 4, v13")
A(f"v_lshl_add_u32 v13, v12, 8, v13\nv_and_b32 v14, 1, v0\nv_lshl_add_u32 v13, v14, 3, v13\ns_add_u32 s48, s44, {L_V-L_K}\nv_add_u32 v13, s48, v13")
A("s_lshl_b32 s48, s30, 2\nv_mov_b32 v14, s48\nv_mov_b32 v15, 1")
A(f"s_waitcnt vmcnt({P['hoA']})\nds_write_b32 v14, v15 offset:{L_F1}")
get_tag()
tag_sel_setup(); chk_sel_setup()
A("v_mov_b32 v11, s31")
A("s_waitcnt vmcnt(0)")
stamp(1)
for dt in range(8):
    r = VR + 4 * dt
    if dt: A(f"v_xor_b32 v12, {32*dt}, v13")
    va = 12 if dt else 13
    A(f"ds_read_b64_tr_b16 v[{r}:{r+1}], v{va}\nds_read_b64_tr_b16 v[{r+2}:{r+3}], v{va} offset:4096")
A(f"s_lshl_b32 s48, s2, 8\ns_lshl_b32 s61, s30, 4\ns_add_u32 s48, s48, s61\ns_add_u32 s48, s48, {HINT}")
A("v_lshlrev_b32 v8, 9, v4\nv_lshl_add_u32 v8, v5, 4, v8")
A(f"s_lshl_b32 s58, s45, 13\ns_lshl_b32 s61, s30, 11\ns_add_u32 s58, s58, s61")
if QP: A(f"s_add_u32 s58, s58, {QP}")
A(f"v_lshrrev_b32 v9, 1, v4\nv_mul_u32_u24 v9, 272, v9\nv_and_b32 v10, 1, v4\nv_lshl_add_u32 v9, v10, 7, v9\nv_lshl_add_u32 v9, v5, 3, v9\ns_mul_i32 s61, s30, 544\nv_add_u32 v9, s61, v9")
A("v_mul_u32_u24 v10, 272, v3\nv_lshl_add_u32 v10, v4, 4, v10")
hint_wait(48, 4)
stamp(2)
gather_loop(["buffer_load_dwordx4 v[24:27], v8, s[36:39], s58 offen sc1",
             "buffer_load_dwordx4 v[28:31], v8, s[36:39], s58 offen offset:256 sc1"], [24, 28], 12, 13, 14, 11)
for k in range(4): A(f"v_add_f32 v{24+k}, v{24+k}, v{28+k}")
A("v_cvt_pk_bf16_f32 v24, v24, v25\nv_cvt_pk_bf16_f32 v25, v26, v27")
A(f"ds_write_b64 v9, v[24:25] offset:{L_Q}")
A(f"s_mov_b64 exec, 1\ns_waitcnt lgkmcnt(0)\nds_add_u32 v7, v15 offset:{L_CA1}\ns_mov_b64 exec, -1")
stamp(3)
lds_wait(7, L_CA1, 4, 12, sleep=0)
QF = 104
for t in range(4): A(f"ds_read_b128 v[{QF+4*t}:{QF+4*t+3}], v10 offset:{L_Q+64*t}")
S0 = 24
for t in range(4):
    A(f"s_waitcnt lgkmcnt({3-t})" if not P["stamps"] else "s_waitcnt lgkmcnt(0)")
    for T in range(2):
        r = KR + 16 * T + 4 * t; d = S0 + 4 * T
        A(f"v_mfma_f32_16x16x32_bf16 v[{d}:{d+3}], v[{r}:{r+3}], v[{QF+4*t}:{QF+4*t+3}], {'0' if t == 0 else f'v[{d}:{d+3}]'}")
A("v_mul_u32_u24 v8, 528, v3\nv_lshl_add_u32 v8, v4, 4, v8\nv_add_u32 v8, s44, v8")
A("s_lshl_b32 s48, s30, 2\nv_lshlrev_b32 v9, 4, v3\nv_add_u32 v9, s48, v9")
A(f"s_mov_b32 s48, {SCALE:#x}\ns_mov_b32 s61, {LOG2E:#x}")
for k in range(0, 8, 2):
    a, b = S0 + k, S0 + k + 1
    A(f"v_cvt_pk_bf16_f32 v{b}, v{a}, v{b}\nv_lshlrev_b32 v{a}, 16, v{b}\nv_and_b32 v{b}, 0xffff0000, v{b}")
    A(f"v_mul_f32 v{a}, s48, v{a}\nv_mul_f32 v{b}, s48, v{b}")
    A(f"v_cvt_pk_bf16_f32 v{b}, v{a}, v{b}\nv_lshlrev_b32 v{a}, 16, v{b}\nv_and_b32 v{b}, 0xffff0000, v{b}")
A("v_max3_f32 v32, v24, v25, v26\nv_max3_f32 v33, v27, v28, v29\nv_max3_f32 v32, v32, v30, v31\nv_max_f32 v32, v32, v33")
swapadd(32, 33, 16, "v_max_f32"); swapadd(32, 33, 32, "v_max_f32")
for k in range(8): A(f"v_sub_f32 v{S0+k}, v{S0+k}, v32")
for k in range(8): A(f"v_mul_f32 v{S0+k}, s61, v{S0+k}")
for k in range(8): A(f"v_exp_f32 v{S0+k}, v{S0+k}")
for k in range(4): A(f"v_cvt_pk_bf16_f32 v{36+k}, v{S0+2*k}, v{S0+2*k+1}")
OD = 40
for dt in range(8):
    A(f"v_mfma_f32_16x16x32_bf16 v[{OD+4*dt}:{OD+4*dt+3}], v[{VR+4*dt}:{VR+4*dt+3}], v[36:39], 0")
for k in range(4): A(f"v_add_f32 v{S0+k}, v{S0+k}, v{S0+4+k}")
A("v_add_f32 v24, v24, v26\nv_add_f32 v25, v25, v27\nv_add_f32 v24, v24, v25")
swapadd(24, 25, 16); swapadd(24, 25, 32)
A("s_mov_b32 exec_lo, 0x00ff00ff\ns_mov_b32 exec_hi, 0x00ff00ff")
for dt in range(8):
    A(f"ds_write_b128 v8, v[{OD+4*dt}:{OD+4*dt+3}] offset:{64*dt}")
A(f"s_mov_b64 exec, 0xff\nds_write_b32 v9, v32 offset:{L_MX}\nds_write_b32 v9, v24 offset:{L_LX}")
A(f"s_mov_b64 exec, 1\ns_waitcnt lgkmcnt(0)\nds_add_u32 v7, v15 offset:{L_CA2}\ns_mov_b64 exec, -1")
A("v_lshrrev_b32 v8, 5, v0\ns_lshl_b32 s48, s30, 1\nv_add_u32 v8, s48, v8")
A(f"v_and_b32 v9, 31, v0\nv_mul_u32_u24 v10, 528, v8\nv_lshl_add_u32 v10, v9, 4, v10\nv_lshlrev_b32 v12, 4, v8")
A("v_lshlrev_b32 v13, 14, v8\nv_lshl_add_u32 v13, v9, 4, v13\nv_lshlrev_b32 v14, 9, v8")
A(f"s_lshl_b32 s48, s45, 8\ns_add_u32 s48, s48, s46\ns_lshl_b32 s58, s48, 9\ns_add_u32 s58, s58, {AP}\ns_lshl_b32 s59, s48, 4\ns_add_u32 s59, s59, {ML}")
A(f"s_lshl_b32 s47, s45, 9\ns_lshl_b32 s48, s46, 1\ns_add_u32 s47, s47, s48\ns_add_u32 s47, s47, {HINT+64}")
A("v_lshrrev_b32 v1, 1, v0\nv_lshlrev_b32 v1, 11, v1\nv_and_b32 v17, 1, v0\nv_lshl_add_u32 v1, v17, 8, v1")
lds_wait(7, L_CA2, 4, 16, sleep=0)
A(f"ds_read_b128 v[24:27], v12 offset:{L_MX}\nds_read_b128 v[28:31], v12 offset:{L_LX}")
for w in range(4): A(f"ds_read_b128 v[{40+4*w}:{43+4*w}], v10 offset:{L_K+8192*w}")
A("s_waitcnt lgkmcnt(0)")
A("v_max3_f32 v32, v24, v25, v26\nv_max_f32 v32, v32, v27")
A(f"s_mov_b32 s61, {LOG2E:#x}")
for w in range(4): A(f"v_sub_f32 v{24+w}, v{24+w}, v32")
for w in range(4): A(f"v_mul_f32 v{24+w}, s61, v{24+w}")
for w in range(4): A(f"v_exp_f32 v{24+w}, v{24+w}")
for k in range(4): A(f"v_mul_f32 v{36+k}, v24, v{40+k}")
A("v_mul_f32 v33, v24, v28")
for w in range(1, 4):
    for k in range(4): A(f"v_fmac_f32 v{36+k}, v{24+w}, v{40+4*w+k}")
    A(f"v_fmac_f32 v33, v{24+w}, v{28+w}")
A("v_mov_b32 v34, 0\nv_mov_b32 v35, 0")
tag_insert(36, 4, 11); tag_insert(32, 4, 11)
A("buffer_store_dwordx4 v[36:39], v13, s[36:39], s58 offen sc1")
A("s_mov_b32 exec_lo, 1\ns_mov_b32 exec_hi, 1")
A("buffer_store_dwordx4 v[32:35], v14, s[36:39], s59 offen sc1")
A("s_mov_b64 exec, -1")
A("s_cmp_lg_u32 s30, 3\ns_cbranch_scc1 L_A_nohint")
A("buffer_store_short v11, v1, s[36:39], s47 offen sc1")
A("L_A_nohint:")
stamp(4)
A("L_H2:")
A("s_lshl_b32 s44, s28, 3\ns_lshr_b32 s46, s29, 2\ns_add_u32 s44, s44, s46")
A(f"s_lshr_b32 s45, s44, 1\ns_lshl_b32 s58, s45, 14\ns_and_b32 s46, s44, 1\ns_lshl_b32 s46, s46, 8\ns_add_u32 s58, s58, s46\ns_lshl_b32 s46, s30, 6\ns_add_u32 s58, s58, s46\ns_add_u32 s58, s58, {AP}")
A(f"s_add_u32 s44, s58, {16*512}")
A(f"s_lshl_b32 s47, s45, 9\ns_add_u32 s47, s47, {ML}")
A(f"s_lshl_b32 s48, s2, 8\ns_add_u32 s48, s48, {HINT+64}")
A("v_lshrrev_b32 v4, 2, v0\nv_and_b32 v5, 3, v0\nv_lshlrev_b32 v8, 9, v4\nv_lshl_add_u32 v8, v5, 4, v8\nv_lshlrev_b32 v9, 4, v4")
A("s_lshl_b32 s46, s30, 5\nv_lshlrev_b32 v10, 3, v5\nv_add_u32 v10, s46, v10\nv_mov_b32 v15, 1")
hint_wait(48, 16)
stamp(6)
gather_loop(["buffer_load_dwordx4 v[24:27], v9, s[36:39], s47 offen sc1",
             "buffer_load_dwordx4 v[28:31], v9, s[36:39], s47 offen offset:256 sc1",
             "buffer_load_dwordx4 v[32:35], v8, s[36:39], s58 offen sc1",
             "buffer_load_dwordx4 v[36:39], v8, s[36:39], s44 offen sc1"], [24, 28, 32, 36], 12, 13, 14, 11)
A("v_and_b32 v24, 0xffffff00, v24\nv_and_b32 v28, 0xffffff00, v28\nv_max_f32 v12, v24, v28")
A(f"v_max_f32_dpp v12, v12, v12 row_ror:4 {DPPM}\nv_max_f32_dpp v12, v12, v12 row_ror:8 {DPPM}")
swapadd(12, 13, 16, "v_max_f32"); swapadd(12, 13, 32, "v_max_f32")
A(f"s_mov_b32 s61, {LOG2E:#x}")
A("v_sub_f32 v24, v24, v12\nv_sub_f32 v28, v28, v12\nv_mul_f32 v24, s61, v24\nv_mul_f32 v28, s61, v28\nv_exp_f32 v24, v24\nv_exp_f32 v28, v28")
A("v_mul_f32 v40, v24, v25")
for k in range(4): A(f"v_mul_f32 v{41+k}, v24, v{32+k}")
A("v_fmac_f32 v40, v28, v29")
for k in range(4): A(f"v_fmac_f32 v{41+k}, v28, v{36+k}")
for m in ("row_ror:4", "row_ror:8"):
    for k in range(5): A(f"v_add_f32_dpp v{40+k}, v{40+k}, v{40+k} {m} {DPPM}")
for wh in (16, 32):
    for k in range(5): A(f"v_mov_b32 v{46+k}, v{40+k}")
    for k in range(5): A(f"v_permlane{wh}_swap_b32 v{46+k}, v{40+k}")
    for k in range(5): A(f"v_add_f32 v{40+k}, v{40+k}, v{46+k}")
A("v_rcp_f32 v40, v40")
for k in range(4): A(f"v_mul_f32 v{41+k}, v{41+k}, v40")
A("v_cvt_pk_bf16_f32 v46, v41, v42\nv_cvt_pk_bf16_f32 v47, v43, v44")
A(f"s_mov_b64 exec, 0xf\nds_write_b64 v10, v[46:47] offset:{L_OV}")
A(f"s_mov_b64 exec, 1\ns_waitcnt lgkmcnt(0)\nds_add_u32 v7, v15 offset:{L_CO}\ns_mov_b64 exec, -1")
stamp(7)
finish()
A("L_G3:")
A("s_setprio 1")
A("v_lshlrev_b32 v4, 2, v0\nds_write_b32 v4, v7")
A("s_lshl_b32 s44, s28, 3\ns_lshr_b32 s46, s29, 2\ns_add_u32 s44, s44, s46")
A("s_and_b32 s45, s29, 3")
if P["prefetch"]:
    A("s_getpc_b64 s[40:41]\nL_pc:")
    A(f"s_sub_u32 s40, s40, L_pc-{KN}_kernel\ns_subb_u32 s41, s41, 0")
    A(f"s_mov_b32 s42, L_code_end-{KN}_kernel\ns_mov_b32 s43, 0x20000")
    A("v_lshlrev_b32 v4, 4, v0\ns_lshl_b32 s46, s30, 10")
    for i in range(3):
        A(f"buffer_load_dwordx4 v[40:43], v4, s[40:43], s46 offen")
        if i < 2: A("s_add_u32 s46, s46, 4096")
A("s_waitcnt lgkmcnt(0)")
tag_load()
A("s_waitcnt lgkmcnt(0)")
A("s_barrier")
srd(36, 26, WS_USED)
srd(40, 4, 2048)
A("s_lshl_b32 s46, s2, 3\nbuffer_load_dwordx2 v[16:17], v7, s[40:43], s46 offen")
selectors(SEL, 8, 9, 10)
srd(32, 20, 7 << 20); srd(40, 12, 8 << 20)
A("s_lshl_b32 s46, s45, 9\ns_lshl_b32 s47, s30, 7\ns_add_u32 s46, s46, s47")
A(f"s_mul_i32 s47, s44, {56*2048}\ns_add_u32 s47, s47, s46")
A("s_lshl_b32 s48, s44, 17\ns_add_u32 s48, s48, s46")
A("v_lshlrev_b32 v4, 11, v2\nv_lshl_add_u32 v4, v3, 4, v4")
A("v_lshlrev_b32 v5, 14, v2\nv_lshl_add_u32 v5, v3, 4, v5")
A("v_lshlrev_b32 v12, 4, v2")
get_tag()
tag_sel_setup(); chk_sel_setup()
A("v_mov_b32 v11, s31")
A("v_bfe_u32 v8, v0, 4, 1\nv_lshl_add_u32 v8, v3, 1, v8\nv_lshlrev_b32 v13, 10, v8")
A(f"s_lshl_b32 s58, s45, 16\ns_lshl_b32 s46, s30, 14\ns_add_u32 s58, s58, s46\ns_lshl_b32 s46, s44, 4\ns_add_u32 s58, s58, s46\ns_add_u32 s58, s58, {OP}")
A(f"s_lshl_b32 s59, s2, 10\ns_add_u32 s59, s59, {OP}\nv_lshlrev_b32 v14, 4, v0")
A("s_lshl_b32 s46, s30, 2\nv_mov_b32 v6, s46")
A("s_waitcnt vmcnt(0)")
lds_wait(6, L_F2, 1, 8)
stamp(1)
dF = P["dF"]
for t in range(15):
    if t >= dF: A(f"s_waitcnt vmcnt({dF-1})")
    if t < 7:
        A(f"buffer_load_dwordx4 v[{W+4*t}:{W+4*t+3}], v4, s[32:35], s47 offen {pol}")
        if t < 6: A(f"s_add_u32 s47, s47, {8*2048}")
    else:
        tt = t - 7
        A(f"buffer_load_dwordx4 v[{W+4*t}:{W+4*t+3}], v5, s[40:43], s48 offen offset:{2048*(tt&1)} {pol}")
        if tt & 1: A("s_add_u32 s48, s48, 4096")
stamp(2)
lds_wait(7, L_FH, 1, 8, sleep=0)
A(f"ds_read_b128 v[20:23], v12 offset:{L_HV}\ns_waitcnt lgkmcnt(0)")
stamp(3)
build_op(OPB, 20, 0, SEL)
for t in range(7):
    if t < 6: build_op(OPB + 4 * ((t + 1) & 1), 20, t + 1, SEL)
    A(f"s_waitcnt vmcnt({14-t})")
    o = OPB + 4 * (t & 1)
    A(f"v_mfma_f32_16x16x32_bf16 v[{ACC}:{ACC+3}], v[{o}:{o+3}], v[{W+4*t}:{W+4*t+3}], {'0' if t == 0 else f'v[{ACC}:{ACC+3}]'}")
lds_wait(7, L_CO, 4, 8, sleep=0)
A(f"ds_read_b128 v[20:23], v12 offset:{L_OV}\ns_waitcnt lgkmcnt(0)")
stamp(4)
build_op(OPB, 20, 0, SEL)
for t in range(8):
    if t < 7: build_op(OPB + 4 * ((t + 1) & 1), 20, t + 1, SEL)
    A(f"s_waitcnt vmcnt({7-t})")
    o = OPB + 4 * (t & 1); w = W + 4 * (7 + t)
    A(f"v_mfma_f32_16x16x32_bf16 v[{ACC}:{ACC+3}], v[{o}:{o+3}], v[{w}:{w+3}], v[{ACC}:{ACC+3}]")
for k in range(4): A(f"v_mov_b32 v{24+k}, v{ACC+k}")
for k in range(4): A(f"v_permlane32_swap_b32 v{24+k}, v{ACC+k}")
for k in range(4): A(f"v_add_f32_dpp v{24+k}, v{ACC+k}, v{24+k} row_ror:8 {DPPM}")
tag_insert(24, 4, 11)
A("s_mov_b64 exec, 0x00ff00ff")
A("buffer_store_dwordx4 v[24:27], v13, s[36:39], s58 offen sc1")
A("s_mov_b64 exec, -1")
stamp(5)
A("s_cmp_lg_u32 s30, 0\ns_cbranch_scc1 L_fin3")
gather_loop(["buffer_load_dwordx4 v[28:31], v14, s[36:39], s59 offen sc1"], [28], 8, 9, 10, 11)
stamp(6)
for m in ("quad_perm:[1,0,3,2]", "quad_perm:[2,3,0,1]", "row_half_mirror", "row_mirror"):
    for k in range(4): A(f"v_add_f32_dpp v{28+k}, v{28+k}, v{28+k} {m} {DPPM}")
for wh in (16, 32):
    for k in range(4): A(f"v_mov_b32 v{32+k}, v{28+k}")
    for k in range(4): A(f"v_permlane{wh}_swap_b32 v{32+k}, v{28+k}")
    for k in range(4): A(f"v_add_f32 v{28+k}, v{28+k}, v{32+k}")
A("v_lshlrev_b32 v32, 16, v16\nv_and_b32 v33, 0xffff0000, v16\nv_lshlrev_b32 v34, 16, v17\nv_and_b32 v35, 0xffff0000, v17")
for k in range(4): A(f"v_add_f32 v{28+k}, v{28+k}, v{32+k}")
A("v_cvt_pk_bf16_f32 v28, v28, v29\nv_cvt_pk_bf16_f32 v29, v30, v31")
srd(40, 22, 2048)
A("s_lshl_b32 s46, s2, 3\ns_mov_b64 exec, 1\nbuffer_store_dwordx2 v[28:29], v7, s[40:43], s46 offen")
A("s_cmp_lg_u32 s2, 0\ns_cbranch_scc1 L_noep")
A(f"s_mov_b32 s46, {EPB}\nbuffer_store_dword v11, v7, s[36:39], 0 offen offset:{EPA}\nbuffer_store_dword v11, v7, s[36:39], s46 offen")
A("L_noep:")
stamp(7)
A("L_fin3:")
if P["stamps"]:
    A("L_stamps:")
    A("s_mov_b64 exec, 1\ns_waitcnt lgkmcnt(0)")
    srd(36, 26, WS_USED)
    A(f"s_lshl_b32 s46, s2, 4\ns_add_u32 s46, s46, s3\ns_lshl_b32 s46, s46, 5\ns_add_u32 s46, s46, {STAMP}")
    for i in range(8): A(f"v_mov_b32 v{24+i}, s{80+2*i}")
    A("buffer_store_dwordx4 v[24:27], v7, s[36:39], s46 offen\nbuffer_store_dwordx4 v[28:31], v7, s[36:39], s46 offen offset:16")
A("L_end:\ns_endpgm")
A("L_code_end:")
A.L = hazard.fix(A.L)
A.footer(124, 96)
A.L.insert(A.L.index(".end_amdhsa_kernel"), "  .amdhsa_float_denorm_mode_32 3")
A.write(OUT)
```

```python
import sys, argparse
from asmlib import *
import hazard

P = dict(
    stamps=0,
    pol="nt",
    dA=4,
    dG=5,
    dF=5,
    hoXG=3,
    hoA=2,
    spin=400000,
    prefetch=1,
    hsleep=2,
    tfix=0,
)
for a in sys.argv[2:]:
    k, v = a.split("=")
    P[k] = v if k == "pol" else int(v)
OUT = sys.argv[1]

EPA, QP, AP, ML, GP, OP, HINT, EPB, STAMP = 0x0, 0x800, 0x10000, 0x9000, 0x90000, 0xAC000, 0xEC000, 0xFC000, 0x200000
WS_USED = 0x300000
L_F1, L_F2, L_CQ, L_CG, L_CA1, L_CA2, L_CO, L_FH = 0, 16, 32, 36, 40, 44, 48, 52
L_OV, L_HV, L_MX, L_LX = 0x100, 0x180, 0x200, 0x280
L_REDQ, L_REDG, L_Q, L_K, L_V = 0x400, 0xC00, 0x1400, 0x2000, 0xA000
LDS_BYTES = 86016
DPPM = "row_mask:0xf bank_mask:0xf"
LOG2E = 0x3fb8aa3b
SCALE = 0x3db504f3

A = Asm()
A.header(256, 768, LDS_BYTES)
_uid = [0]
def lab(p):
    _uid[0] += 1
    return f"L_{p}_{_uid[0]}"
def stamp(i):
    if P["stamps"]:
        A(f"s_memrealtime s[{80+2*i}:{81+2*i}]")
def srd(d, base, size):
    A(f"s_mov_b32 s{d}, s{base}\ns_mov_b32 s{d+1}, s{base+1}\ns_mov_b32 s{d+2}, {size:#x}\ns_mov_b32 s{d+3}, 0x20000")
def tag_load():
    A(f"s_load_dword s31, s[26:27], {EPA}\ns_load_dword s57, s[26:27], {EPB}")
def get_tag():
    A("s_mul_i32 s31, s31, 0x9E3779B5\ns_mul_i32 s57, s57, 0x85EBCA6C\ns_add_u32 s31, s31, s57\ns_add_u32 s31, s31, 0x6A09E667")
def lds_wait(vaddr, off, val, vt, sleep=1):
    l = lab("lw"); e = lab("lwd")
    A(f"s_mov_b32 s60, {P['spin']*4}")
    A(f"{l}:\nds_read_b32 v{vt}, v{vaddr} offset:{off}\ns_waitcnt lgkmcnt(0)\nv_readfirstlane_b32 s61, v{vt}")
    A(f"s_cmp_ge_u32 s61, {val}\ns_cbranch_scc1 {e}")
    if sleep: A(f"s_sleep {sleep}")
    A(f"s_sub_u32 s60, s60, 1\ns_cmp_lg_u32 s60, 0\ns_cbranch_scc1 {l}\n{e}:")
def hint_wait(sbase_off, nd):
    l = lab("hw"); e = lab("hwd")
    A(f"s_add_u32 s62, s26, s{sbase_off}\ns_addc_u32 s63, s27, 0")
    A("s_and_b32 s59, s31, 0xffff\ns_mul_i32 s59, s59, 0x10001")
    A(f"s_mov_b32 s60, {P['spin']}")
    A(f"{l}:\ns_load_dwordx{nd} s[64:{63+nd}], s[62:63], 0 glc\ns_waitcnt lgkmcnt(0)")
    A("s_and_b64 s[56:57], s[64:65], s[66:67]\ns_or_b64 s[64:65], s[64:65], s[66:67]")
    for k in range(68, 64 + nd, 2):
        A(f"s_and_b64 s[56:57], s[56:57], s[{k}:{k+1}]\ns_or_b64 s[64:65], s[64:65], s[{k}:{k+1}]")
    A("s_and_b32 s56, s56, s57\ns_or_b32 s64, s64, s65\ns_xor_b32 s56, s56, s59\ns_xor_b32 s64, s64, s59\ns_or_b32 s56, s56, s64")
    A(f"s_cbranch_scc0 {e}")
    if P["hsleep"]: A(f"s_sleep {P['hsleep']}")
    A(f"s_sub_u32 s60, s60, 1\ns_cmp_lg_u32 s60, 0\ns_cbranch_scc1 {l}\n{e}:")
def tag_insert(vreg, n, vtag):
    for k in range(n):
        A(f"v_perm_b32 v{vreg+k}, v{vreg+k}, v{vtag}, s{52+(k&3)}")
def tag_sel_setup():
    for k in range(4):
        A(f"s_mov_b32 s{52+k}, {0x07060500+k:#x}")
def tag_check(bases, vt0, vt1, vacc, vtag):
    first = True
    for b in bases:
        A(f"v_perm_b32 v{vt0}, v{b+1}, v{b}, s50")
        A(f"v_perm_b32 v{vt1}, v{b+3}, v{b+2}, s51")
        if first:
            A(f"v_bitop3_b32 v{vacc}, v{vt0}, v{vt1}, v{vtag} bitop3:0x56")
            first = False
        else:
            A(f"v_bitop3_b32 v{vt0}, v{vt0}, v{vt1}, v{vtag} bitop3:0x56")
            A(f"v_or_b32 v{vacc}, v{vacc}, v{vt0}")
def chk_sel_setup():
    A("s_mov_b32 s50, 0x0c0c0400\ns_mov_b32 s51, 0x04000c0c")
def gather_loop(loads, bases, vt0, vt1, vacc, vtag, sleep=0):
    l = lab("gl"); e = lab("gld")
    A(f"s_mov_b32 s60, {P['spin']}")
    A(f"{l}:")
    for x in loads: A(x)
    A("s_waitcnt vmcnt(0)")
    tag_check(bases, vt0, vt1, vacc, vtag)
    A(f"v_cmp_ne_u32 vcc, 0, v{vacc}")
    A(f"s_and_b64 exec, exec, vcc\ns_cbranch_scc0 {e}")
    if sleep: A(f"s_sleep {sleep}")
    A(f"s_sub_u32 s60, s60, 1\ns_cmp_lg_u32 s60, 0\ns_cbranch_scc1 {l}\n{e}:")
    A("s_mov_b64 exec, -1")
def swapadd(v, t, which, op="v_add_f32"):
    A(f"v_mov_b32 v{t}, v{v}\nv_permlane{which}_swap_b32 v{t}, v{v}\n{op} v{v}, v{v}, v{t}")
def allsum(v, t):
    for m in ("quad_perm:[1,0,3,2]", "quad_perm:[2,3,0,1]", "row_half_mirror", "row_mirror"):
        A(f"v_add_f32_dpp v{v}, v{v}, v{v} {m} {DPPM}")
    swapadd(v, t, 16); swapadd(v, t, 32)
def bf16r(v):
    A(f"v_cvt_pk_bf16_f32 v{v}, v{v}, v{v}\nv_lshlrev_b32 v{v}, 16, v{v}")
def selectors(S, t0, t1, t2):
    A(f"v_and_b32 v{t0}, 1, v3\nv_cmp_eq_u32 vcc, 1, v{t0}")
    A(f"v_mov_b32 v{t0}, 0x0c0c0100\nv_mov_b32 v{t1}, 0x01000c0c\nv_cndmask_b32 v{t0}, v{t0}, v{t1}, vcc")
    A(f"v_mov_b32 v{t1}, 0x0c0c0302\nv_mov_b32 v{t2}, 0x03020c0c\nv_cndmask_b32 v{t1}, v{t1}, v{t2}, vcc")
    A(f"v_lshrrev_b32 v{t2}, 1, v3")
    for d in range(4):
        A(f"v_cmp_eq_u32 vcc, {d}, v{t2}")
        A(f"v_mov_b32 v{S+2*d}, 0x0c0c0c0c\nv_mov_b32 v{S+2*d+1}, 0x0c0c0c0c")
        A(f"v_cndmask_b32 v{S+2*d}, v{S+2*d}, v{t0}, vcc\nv_cndmask_b32 v{S+2*d+1}, v{S+2*d+1}, v{t1}, vcc")
def build_op(dst, xp, t, S):
    for d in range(4):
        A(f"v_perm_b32 v{dst+d}, v{xp+(t>>1)}, v{xp+(t>>1)}, v{S+2*d+(t&1)}")
def finish():
    if P["stamps"]:
        A("s_branch L_stamps")
    else:
        A("s_endpgm")

pol = P["pol"]
A("s_cmp_ge_u32 s2, 256\ns_cbranch_scc1 L_end")
A("s_load_dwordx16 s[4:19], s[0:1], 0\ns_load_dwordx8 s[20:27], s[0:1], 64")
if P["stamps"]:
    for i in range(1, 8): A(f"s_mov_b32 s{80+2*i}, 0")
stamp(0)
if P["tfix"]: A("s_memrealtime s[94:95]")
A("v_lshrrev_b32 v1, 6, v0\nv_and_b32 v0, 63, v0\nv_readfirstlane_b32 s3, v1")
A("s_and_b32 s28, s2, 7\ns_lshr_b32 s29, s2, 3")
A("v_lshrrev_b32 v2, 3, v0\nv_and_b32 v3, 7, v0\nv_mov_b32 v7, 0")
A("s_and_b32 s30, s3, 3\ns_lshr_b32 s44, s3, 2")
A("s_lshl_b32 s49, s28, 4\ns_lshr_b32 s45, s29, 1\ns_add_u32 s49, s49, s45")
A("s_cmp_eq_u32 s44, 2\ns_cbranch_scc1 L_G3")
A("s_cmp_eq_u32 s44, 1\ns_cbranch_scc1 L_G2")
A("s_setprio 3")
A("s_bitcmp1_b32 s29, 0\ns_cbranch_scc1 L_A")
W = 40
XP = 16
SEL = 104
OPB = 112
ACC = 120
A("s_mov_b32 s45, 0")
A("s_and_b32 s46, s49, 1\ns_lshl_b32 s46, s46, 9\ns_lshl_b32 s47, s30, 7\ns_add_u32 s48, s46, s47")
A("s_lshl_b32 s47, s48, 13\ns_lshr_b32 s46, s49, 1\ns_lshl_b32 s46, s46, 7\ns_add_u32 s47, s47, s46")
A("v_lshlrev_b32 v4, 17, v2\nv_lshl_add_u32 v4, v3, 4, v4")
A("v_lshlrev_b32 v5, 5, v0\nv_lshlrev_b32 v6, 5, v2\ns_lshl_b32 s46, s48, 1")
A("s_waitcnt lgkmcnt(0)")
srd(40, 4, 2048); srd(32, 10, 8 << 20)
def xloads():
    A("buffer_load_dwordx4 v[8:11], v5, s[40:43], 0 offen\nbuffer_load_dwordx4 v[12:15], v5, s[40:43], 0 offen offset:16")
    A(f"buffer_load_dwordx4 v[{XP}:{XP+3}], v6, s[40:43], s46 offen\nbuffer_load_dwordx4 v[{XP+4}:{XP+7}], v6, s[40:43], s46 offen offset:16")
tag_load()
xloads()
for t in range(16):
    if t == 8: A("s_waitcnt lgkmcnt(0)\ns_barrier")
    A(f"buffer_load_dwordx4 v[{W+4*t}:{W+4*t+3}], v4, s[32:35], s47 offen {pol}")
    if t < 15: A("s_add_u32 s47, s47, 8192")
A(f"s_lshl_b32 s58, s49, 8")
if QP: A(f"s_add_u32 s58, s58, {QP}")
A("v_and_b32 v1, 15, v0\nv_lshlrev_b32 v1, 12, v1\nv_bfe_u32 v5, v0, 4, 1\nv_lshl_add_u32 v1, v5, 8, v1")
A(f"s_lshr_b32 s59, s49, 5\ns_lshl_b32 s59, s59, 9\ns_and_b32 s46, s49, 31\ns_lshl_b32 s46, s46, 1\ns_add_u32 s59, s59, s46\ns_add_u32 s47, s59, {HINT+2048}")
A("s_mov_b32 s48, -1")
A("s_waitcnt vmcnt(16)")
A("s_branch L_XG")
A("L_G2:")
A("s_setprio 2")
A("s_mov_b32 s45, 1")
A("s_and_b32 s46, s29, 3\ns_lshl_b32 s46, s46, 8\ns_and_b32 s47, s30, 1\ns_lshl_b32 s47, s47, 7\ns_add_u32 s48, s46, s47")
A("s_mul_i32 s46, s28, 7\ns_lshr_b32 s47, s29, 2\ns_add_u32 s59, s46, s47")
A("s_mul_i32 s44, s48, 7168\ns_lshl_b32 s46, s59, 7\ns_add_u32 s44, s44, s46")
A(f"v_mul_u32_u24 v4, {16*7168}, v2\nv_lshl_add_u32 v4, v3, 4, v4")
A("v_lshlrev_b32 v5, 5, v0\nv_lshlrev_b32 v6, 5, v2\ns_lshl_b32 s46, s48, 1")
A("s_waitcnt lgkmcnt(0)")
srd(40, 4, 2048); srd(32, 16, 7 << 20)
A("s_cmp_ge_u32 s30, 2\ns_cselect_b32 s32, s18, s16\ns_cselect_b32 s33, s19, s17")
tag_load()
A("s_cmp_ge_u32 s29, 28\ns_cbranch_scc1 L_G2_none")
xloads()
A(f"s_lshl_b32 s58, s59, 2\ns_and_b32 s46, s29, 3\ns_add_u32 s58, s58, s46\ns_lshl_b32 s58, s58, 9\ns_add_u32 s58, s58, {GP}")
A("v_lshlrev_b32 v1, 11, v0\nv_bfe_u32 v5, v0, 2, 1\nv_lshlrev_b32 v5, 3, v5\nv_sub_u32 v1, v1, v5")
A(f"s_andn2_b32 s47, s29, 3\ns_lshl_b32 s47, s47, 11\ns_lshl_b32 s59, s28, 8\ns_add_u32 s47, s47, s59\ns_lshl_b32 s46, s46, 1\ns_add_u32 s47, s47, s46\ns_add_u32 s47, s47, {HINT+128+8}")
A("s_mov_b32 s48, 0xff")
A("s_waitcnt lgkmcnt(0)")
A("s_barrier")
A("s_waitcnt vmcnt(0)")
A("L_XG:")
stamp(1)
srd(36, 26, WS_USED)
for k in range(8):
    A(f"v_lshlrev_b32 v{24+2*k}, 16, v{8+k}\nv_and_b32 v{25+2*k}, 0xffff0000, v{8+k}")
for k in range(8):
    A(f"v_add_f32 v{8+k}, v{24+2*k}, v{25+2*k}")
for k in range(4): A(f"v_add_f32 v{8+k}, v{8+k}, v{12+k}")
A("v_add_f32 v8, v8, v10\nv_add_f32 v9, v9, v11\nv_add_f32 v8, v8, v9")
allsum(8, 9)
A("v_mul_f32 v8, 0x3a800000, v8")
for k in range(16): A(f"v_sub_f32 v{24+k}, v{24+k}, v8")
A("v_mul_f32 v10, v24, v24\nv_mul_f32 v11, v25, v25")
for k in range(2, 16): A(f"v_fmac_f32 v{10+(k&1)}, v{24+k}, v{24+k}")
A("v_add_f32 v10, v10, v11")
allsum(10, 9)
A("v_mul_f32 v10, 0x3a800000, v10")
bf16r(8); bf16r(10)
A("v_add_f32 v10, 0x3727c5ac, v10")
bf16r(10)
A("v_sqrt_f32 v10, v10")
bf16r(10)
A("v_rcp_f32 v10, v10")
for k in range(8):
    a, b = 24 + 2 * k, 25 + 2 * k
    A(f"v_lshlrev_b32 v{a}, 16, v{XP+k}\nv_and_b32 v{b}, 0xffff0000, v{XP+k}")
    A(f"v_sub_f32 v{a}, v{a}, v8\nv_sub_f32 v{b}, v{b}, v8")
    A(f"v_cvt_pk_bf16_f32 v{XP+k}, v{a}, v{b}")
    A(f"v_lshlrev_b32 v{a}, 16, v{XP+k}\nv_and_b32 v{b}, 0xffff0000, v{XP+k}")
    A(f"v_mul_f32 v{a}, v{a}, v10\nv_mul_f32 v{b}, v{b}, v10")
    A(f"v_cvt_pk_bf16_f32 v{XP+k}, v{a}, v{b}")
selectors(SEL, 8, 9, 10)
get_tag()
tag_sel_setup(); chk_sel_setup()
A("v_mov_b32 v11, s31")
A("s_lshl_b32 s46, s30, 2\ns_lshl_b32 s61, s45, 4\ns_add_u32 s46, s46, s61\nv_mov_b32 v12, s46")
A(f"s_lshl_b32 s46, s45, 11\ns_add_u32 s46, s46, {L_REDQ}")
A("v_lshrrev_b32 v8, 5, v0\nv_lshlrev_b32 v13, 8, v8\nv_lshl_add_u32 v13, v3, 5, v13\nv_bfe_u32 v9, v0, 4, 1\nv_lshl_add_u32 v13, v9, 4, v13")
A("s_lshl_b32 s61, s30, 9\ns_add_u32 s61, s61, s46\nv_add_u32 v13, s61, v13")
A("v_and_b32 v9, 15, v0\nv_lshlrev_b32 v9, 4, v9\nv_lshrrev_b32 v10, 4, v0\nv_lshl_add_u32 v14, v10, 9, v9\nv_add_u32 v14, s46, v14")
A("v_lshl_add_u32 v15, v8, 8, v9")
A("v_mov_b32 v5, 1")
stamp(2)
A("s_cmp_eq_u32 s45, 0\ns_cbranch_scc1 L_XG_mm")
A("s_lshl_b32 s46, s30, 2\nv_mov_b32 v6, s46")
lds_wait(6, L_F1, 1, 8)
stamp(3)
dG = P["dG"]
for t in range(16):
    if t >= dG: A(f"s_waitcnt vmcnt({dG-1})")
    A(f"buffer_load_dwordx4 v[{W+4*t}:{W+4*t+3}], v4, s[32:35], s44 offen {pol}")
    if t < 15: A("s_add_u32 s44, s44, 7168")
A("L_XG_mm:")
build_op(OPB, XP, 0, SEL)
for t in range(16):
    if t < 15: build_op(OPB + 4 * ((t + 1) & 1), XP, t + 1, SEL)
    A(f"s_waitcnt vmcnt({15-t})")
    if 15 - t == P["hoXG"]:
        A("ds_write_b32 v12, v5")
    o = OPB + 4 * (t & 1)
    A(f"v_mfma_f32_16x16x32_bf16 v[{ACC}:{ACC+3}], v[{o}:{o+3}], v[{W+4*t}:{W+4*t+3}], {'0' if t == 0 else f'v[{ACC}:{ACC+3}]'}")
stamp(4)
A("s_mov_b32 exec_lo, 0x00ff00ff\ns_mov_b32 exec_hi, 0xff00ff00")
A(f"ds_write_b128 v13, v[{ACC}:{ACC+3}]")
A("s_mov_b64 exec, 1")
A(f"s_lshl_b32 s46, s45, 2\ns_add_u32 s46, s46, {L_CQ}\nv_mov_b32 v6, s46")
A("s_waitcnt lgkmcnt(0)")
A("ds_add_rtn_u32 v8, v6, v5\ns_waitcnt lgkmcnt(0)\nv_readfirstlane_b32 s46, v8")
A("s_mov_b64 exec, -1")
A("s_cmp_eq_u32 s46, 3\ns_cbranch_scc0 L_XG_done")
A("ds_read_b128 v[24:27], v14\nds_read_b128 v[28:31], v14 offset:256\ns_waitcnt lgkmcnt(0)")
for k in range(4): A(f"v_add_f32 v{24+k}, v{24+k}, v{28+k}")
for k in range(4): swapadd(24 + k, 28 + k, 16)
A("s_mov_b32 exec_lo, 0xffff\ns_mov_b32 exec_hi, 0xffff")
A("s_cmp_eq_u32 s45, 1\ns_cbranch_scc1 L_XG_pub")
A("s_mov_b64 exec, -1")
for k in range(4): swapadd(24 + k, 28 + k, 32)
A("s_mov_b64 exec, 0xffff")
A("L_XG_pub:")
tag_insert(24, 4, 11)
A("buffer_store_dwordx4 v[24:27], v15, s[36:39], s58 offen sc1")
A("s_mov_b32 exec_lo, s48\ns_mov_b32 exec_hi, 0")
A("buffer_store_short v11, v1, s[36:39], s47 offen sc1")
A("s_mov_b64 exec, -1")
stamp(5)
A("s_cmp_eq_u32 s45, 1\ns_cbranch_scc1 L_HG")
A("s_branch L_H2")
A("L_XG_done:")
A("s_cmp_eq_u32 s45, 0\ns_cbranch_scc1 L_H2")
finish()
A("L_G2_none:")
A("s_waitcnt lgkmcnt(0)")
A("s_barrier")
srd(36, 26, WS_USED)
A("s_lshl_b32 s46, s30, 2\nv_mov_b32 v6, s46\nv_mov_b32 v5, 1")
lds_wait(6, L_F1, 1, 8)
A(f"ds_write_b32 v6, v5 offset:{L_F2}")
A("s_cmp_lg_u32 s30, 0\ns_cbranch_scc1 L_fin1")
get_tag()
chk_sel_setup()
A("v_mov_b32 v11, s31")
A("L_HG:")
A("s_lshl_b32 s44, s28, 3\ns_lshr_b32 s46, s29, 2\ns_add_u32 s44, s44, s46\ns_mul_i32 s44, s44, 56")
A("v_lshrrev_b32 v8, 2, v0\nv_min_u32 v8, 13, v8\nv_lshl_add_u32 v8, v8, 2, s44")
A("v_lshrrev_b32 v9, 6, v8\nv_and_b32 v8, 63, v8\nv_lshlrev_b32 v8, 2, v8\nv_lshl_add_u32 v8, v9, 11, v8\nv_and_b32 v9, 3, v0\nv_lshl_add_u32 v8, v9, 9, v8")
A(f"s_lshl_b32 s46, s2, 8\ns_add_u32 s46, s46, {HINT+128}\ns_lshr_b32 s59, s29, 2")
A("s_cmp_eq_u32 s59, 0\ns_cselect_b32 s61, 8, 0\ns_add_u32 s61, s61, s46\ns_add_u32 s62, s26, s61\ns_addc_u32 s63, s27, 0")
A("s_cmp_eq_u32 s59, 7\ns_cselect_b32 s61, 0, 8\ns_add_u32 s61, s61, s46\ns_add_u32 s56, s26, s61\ns_addc_u32 s57, s27, 0")
A("s_and_b32 s59, s31, 0xffff\ns_mul_i32 s59, s59, 0x10001")
A(f"s_mov_b32 s60, {P['spin']}")
A("L_hgw:\ns_load_dwordx2 s[64:65], s[62:63], 0 glc\ns_load_dwordx2 s[66:67], s[56:57], 0 glc\ns_waitcnt lgkmcnt(0)")
A("s_xor_b32 s64, s64, s59\ns_xor_b32 s65, s65, s59\ns_xor_b32 s66, s66, s59\ns_xor_b32 s67, s67, s59\ns_or_b64 s[64:65], s[64:65], s[66:67]")
A("s_cbranch_scc0 L_hgd\ns_sleep 2\ns_sub_u32 s60, s60, 1\ns_cmp_lg_u32 s60, 0\ns_cbranch_scc1 L_hgw\nL_hgd:")
stamp(6)
A(f"s_mov_b32 s46, {GP}")
gather_loop(["buffer_load_dwordx4 v[24:27], v8, s[36:39], s46 offen sc1",
             "buffer_load_dwordx4 v[28:31], v8, s[36:39], s46 offen offset:256 sc1"], [24, 28], 12, 13, 14, 11)
for m in ("quad_perm:[1,0,3,2]", "quad_perm:[2,3,0,1]"):
    for k in range(8): A(f"v_add_f32_dpp v{24+k}, v{24+k}, v{24+k} {m} {DPPM}")
A("v_cmp_eq_u32 vcc, 1, v9\nv_cndmask_b32 v24, v24, v25, vcc\nv_cndmask_b32 v28, v28, v29, vcc")
A("v_cmp_eq_u32 vcc, 2, v9\nv_cndmask_b32 v24, v24, v26, vcc\nv_cndmask_b32 v28, v28, v30, vcc")
A("v_cmp_eq_u32 vcc, 3, v9\nv_cndmask_b32 v24, v24, v27, vcc\nv_cndmask_b32 v28, v28, v31, vcc")
bf16r(24); bf16r(28)
A(f"v_mul_f32 v25, {(LOG2E ^ 0x80000000):#x}, v24\nv_exp_f32 v25, v25\nv_add_f32 v25, 1.0, v25\nv_rcp_f32 v25, v25\nv_mul_f32 v24, v24, v25")
bf16r(24)
A("v_mul_f32 v24, v24, v28\nv_cvt_pk_bf16_f32 v24, v24, v24")
A("v_lshlrev_b32 v8, 4, v3\nv_lshl_add_u32 v8, v2, 1, v8")
A(f"ds_write_b16 v8, v24 offset:{L_HV}")
A(f"v_mov_b32 v5, 1\ns_waitcnt lgkmcnt(0)\nds_write_b32 v7, v5 offset:{L_FH}")
stamp(7)
A("L_fin1:")
finish()
KR, VR = 40, 72
A("L_A:")
A("s_lshr_b32 s45, s49, 5\ns_and_b32 s46, s49, 31")
A(f"s_lshl_b32 s47, s45, 23\ns_lshl_b32 s48, s46, 15\ns_add_u32 s47, s47, s48\ns_lshl_b32 s48, s30, 13\ns_add_u32 s47, s47, s48\ns_add_u32 s47, s47, {28672*256}")
A("v_lshrrev_b32 v4, 4, v0\nv_and_b32 v5, 15, v0")
A("v_xor_b32 v6, v5, v4\nv_lshlrev_b32 v6, 4, v6\nv_lshl_add_u32 v8, v4, 8, v6")
A("v_xor_b32 v9, 64, v8\nv_xor_b32 v10, 128, v8\nv_xor_b32 v11, 192, v8")
A("v_lshlrev_b32 v12, 1, v4\nv_xor_b32 v12, v5, v12\nv_lshlrev_b32 v12, 4, v12\nv_lshl_add_u32 v12, v4, 8, v12\nv_xor_b32 v13, 128, v12")
A(f"s_add_u32 s44, s48, {L_K}")
A("s_waitcnt lgkmcnt(0)")
srd(32, 6, 32 << 20); srd(40, 8, 32 << 20)
tag_load()
dA = P["dA"]
n = 0
for mat, sr in ((0, 32), (1, 40)):
    for i in range(8):
        if i % 4 == 0:
            lb = (L_V - L_K) * mat + 4096 * (i // 4)
            A(f"s_add_u32 m0, s44, {lb}")
            A(f"s_add_u32 s48, s47, {4096*(i//4)}")
        if n == dA: A("s_waitcnt lgkmcnt(0)\ns_barrier")
        if n >= dA: A(f"s_waitcnt vmcnt({dA-1})")
        va = (8 + (i & 3)) if mat == 0 else (12 + (i & 1))
        A(f"buffer_load_dwordx4 v{va}, s[{sr}:{sr+3}], s48 offen offset:{1024*(i&3)} {pol} lds")
        n += 1
srd(36, 26, WS_USED)
A("v_lshl_add_u32 v8, v5, 8, v6\nv_add_u32 v8, s44, v8")
A("v_xor_b32 v9, 64, v8\nv_xor_b32 v10, 128, v8\nv_xor_b32 v11, 192, v8")
for T in range(2):
    for t in range(4):
        r = KR + 16 * T + 4 * t
        A(f"ds_read_b128 v[{r}:{r+3}], v{8+t} offset:{4096*T}")
A("v_lshrrev_b32 v12, 2, v0")
A("v_and_b32 v13, 7, v12\nv_lshlrev_b32 v13, 1, v13\nv_bfe_u32 v14, v0, 1, 1\nv_xor_b32 v13, v13, v14\nv_lshlrev_b32 v13, 4, v13")
A(f"v_lshl_add_u32 v13, v12, 8, v13\nv_and_b32 v14, 1, v0\nv_lshl_add_u32 v13, v14, 3, v13\ns_add_u32 s48, s44, {L_V-L_K}\nv_add_u32 v13, s48, v13")
A("s_lshl_b32 s48, s30, 2\nv_mov_b32 v14, s48\nv_mov_b32 v15, 1")
A(f"s_waitcnt vmcnt({P['hoA']})\nds_write_b32 v14, v15 offset:{L_F1}")
get_tag()
tag_sel_setup(); chk_sel_setup()
A("v_mov_b32 v11, s31")
A("s_waitcnt vmcnt(0)")
stamp(1)
for dt in range(8):
    r = VR + 4 * dt
    if dt: A(f"v_xor_b32 v12, {32*dt}, v13")
    va = 12 if dt else 13
    A(f"ds_read_b64_tr_b16 v[{r}:{r+1}], v{va}\nds_read_b64_tr_b16 v[{r+2}:{r+3}], v{va} offset:4096")
A(f"s_lshl_b32 s48, s2, 8\ns_lshl_b32 s61, s30, 4\ns_add_u32 s48, s48, s61\ns_add_u32 s48, s48, {HINT}")
A("v_lshlrev_b32 v8, 9, v4\nv_lshl_add_u32 v8, v5, 4, v8")
A(f"s_lshl_b32 s58, s45, 13\ns_lshl_b32 s61, s30, 11\ns_add_u32 s58, s58, s61")
if QP: A(f"s_add_u32 s58, s58, {QP}")
A(f"v_lshrrev_b32 v9, 1, v4\nv_mul_u32_u24 v9, 272, v9\nv_and_b32 v10, 1, v4\nv_lshl_add_u32 v9, v10, 7, v9\nv_lshl_add_u32 v9, v5, 3, v9\ns_mul_i32 s61, s30, 544\nv_add_u32 v9, s61, v9")
A("v_mul_u32_u24 v10, 272, v3\nv_lshl_add_u32 v10, v4, 4, v10")
hint_wait(48, 4)
stamp(2)
gather_loop(["buffer_load_dwordx4 v[24:27], v8, s[36:39], s58 offen sc1",
             "buffer_load_dwordx4 v[28:31], v8, s[36:39], s58 offen offset:256 sc1"], [24, 28], 12, 13, 14, 11)
for k in range(4): A(f"v_add_f32 v{24+k}, v{24+k}, v{28+k}")
A("v_cvt_pk_bf16_f32 v24, v24, v25\nv_cvt_pk_bf16_f32 v25, v26, v27")
A(f"ds_write_b64 v9, v[24:25] offset:{L_Q}")
A(f"s_mov_b64 exec, 1\ns_waitcnt lgkmcnt(0)\nds_add_u32 v7, v15 offset:{L_CA1}\ns_mov_b64 exec, -1")
stamp(3)
lds_wait(7, L_CA1, 4, 12, sleep=0)
QF = 104
for t in range(4): A(f"ds_read_b128 v[{QF+4*t}:{QF+4*t+3}], v10 offset:{L_Q+64*t}")
S0 = 24
for t in range(4):
    A(f"s_waitcnt lgkmcnt({3-t})" if not P["stamps"] else "s_waitcnt lgkmcnt(0)")
    for T in range(2):
        r = KR + 16 * T + 4 * t; d = S0 + 4 * T
        A(f"v_mfma_f32_16x16x32_bf16 v[{d}:{d+3}], v[{r}:{r+3}], v[{QF+4*t}:{QF+4*t+3}], {'0' if t == 0 else f'v[{d}:{d+3}]'}")
A("v_mul_u32_u24 v8, 528, v3\nv_lshl_add_u32 v8, v4, 4, v8\nv_add_u32 v8, s44, v8")
A("s_lshl_b32 s48, s30, 2\nv_lshlrev_b32 v9, 4, v3\nv_add_u32 v9, s48, v9")
A(f"s_mov_b32 s48, {SCALE:#x}\ns_mov_b32 s61, {LOG2E:#x}")
for k in range(0, 8, 2):
    a, b = S0 + k, S0 + k + 1
    A(f"v_cvt_pk_bf16_f32 v{b}, v{a}, v{b}\nv_lshlrev_b32 v{a}, 16, v{b}\nv_and_b32 v{b}, 0xffff0000, v{b}")
    A(f"v_mul_f32 v{a}, s48, v{a}\nv_mul_f32 v{b}, s48, v{b}")
    A(f"v_cvt_pk_bf16_f32 v{b}, v{a}, v{b}\nv_lshlrev_b32 v{a}, 16, v{b}\nv_and_b32 v{b}, 0xffff0000, v{b}")
A("v_max3_f32 v32, v24, v25, v26\nv_max3_f32 v33, v27, v28, v29\nv_max3_f32 v32, v32, v30, v31\nv_max_f32 v32, v32, v33")
swapadd(32, 33, 16, "v_max_f32"); swapadd(32, 33, 32, "v_max_f32")
for k in range(8): A(f"v_sub_f32 v{S0+k}, v{S0+k}, v32")
for k in range(8): A(f"v_mul_f32 v{S0+k}, s61, v{S0+k}")
for k in range(8): A(f"v_exp_f32 v{S0+k}, v{S0+k}")
for k in range(4): A(f"v_cvt_pk_bf16_f32 v{36+k}, v{S0+2*k}, v{S0+2*k+1}")
OD = 40
for dt in range(8):
    A(f"v_mfma_f32_16x16x32_bf16 v[{OD+4*dt}:{OD+4*dt+3}], v[{VR+4*dt}:{VR+4*dt+3}], v[36:39], 0")
for k in range(4): A(f"v_add_f32 v{S0+k}, v{S0+k}, v{S0+4+k}")
A("v_add_f32 v24, v24, v26\nv_add_f32 v25, v25, v27\nv_add_f32 v24, v24, v25")
swapadd(24, 25, 16); swapadd(24, 25, 32)
A("s_mov_b32 exec_lo, 0x00ff00ff\ns_mov_b32 exec_hi, 0x00ff00ff")
for dt in range(8):
    A(f"ds_write_b128 v8, v[{OD+4*dt}:{OD+4*dt+3}] offset:{64*dt}")
A(f"s_mov_b64 exec, 0xff\nds_write_b32 v9, v32 offset:{L_MX}\nds_write_b32 v9, v24 offset:{L_LX}")
A(f"s_mov_b64 exec, 1\ns_waitcnt lgkmcnt(0)\nds_add_u32 v7, v15 offset:{L_CA2}\ns_mov_b64 exec, -1")
A("v_lshrrev_b32 v8, 5, v0\ns_lshl_b32 s48, s30, 1\nv_add_u32 v8, s48, v8")
A(f"v_and_b32 v9, 31, v0\nv_mul_u32_u24 v10, 528, v8\nv_lshl_add_u32 v10, v9, 4, v10\nv_lshlrev_b32 v12, 4, v8")
A("v_lshlrev_b32 v13, 14, v8\nv_lshl_add_u32 v13, v9, 4, v13\nv_lshlrev_b32 v14, 9, v8")
A(f"s_lshl_b32 s48, s45, 8\ns_add_u32 s48, s48, s46\ns_lshl_b32 s58, s48, 9\ns_add_u32 s58, s58, {AP}\ns_lshl_b32 s59, s48, 4\ns_add_u32 s59, s59, {ML}")
A(f"s_lshl_b32 s47, s45, 9\ns_lshl_b32 s48, s46, 1\ns_add_u32 s47, s47, s48\ns_add_u32 s47, s47, {HINT+64}")
A("v_lshrrev_b32 v1, 1, v0\nv_lshlrev_b32 v1, 11, v1\nv_and_b32 v17, 1, v0\nv_lshl_add_u32 v1, v17, 8, v1")
lds_wait(7, L_CA2, 4, 16, sleep=0)
A(f"ds_read_b128 v[24:27], v12 offset:{L_MX}\nds_read_b128 v[28:31], v12 offset:{L_LX}")
for w in range(4): A(f"ds_read_b128 v[{40+4*w}:{43+4*w}], v10 offset:{L_K+8192*w}")
A("s_waitcnt lgkmcnt(0)")
A("v_max3_f32 v32, v24, v25, v26\nv_max_f32 v32, v32, v27")
A(f"s_mov_b32 s61, {LOG2E:#x}")
for w in range(4): A(f"v_sub_f32 v{24+w}, v{24+w}, v32")
for w in range(4): A(f"v_mul_f32 v{24+w}, s61, v{24+w}")
for w in range(4): A(f"v_exp_f32 v{24+w}, v{24+w}")
for k in range(4): A(f"v_mul_f32 v{36+k}, v24, v{40+k}")
A("v_mul_f32 v33, v24, v28")
for w in range(1, 4):
    for k in range(4): A(f"v_fmac_f32 v{36+k}, v{24+w}, v{40+4*w+k}")
    A(f"v_fmac_f32 v33, v{24+w}, v{28+w}")
A("v_mov_b32 v34, 0\nv_mov_b32 v35, 0")
tag_insert(36, 4, 11); tag_insert(32, 4, 11)
A("buffer_store_dwordx4 v[36:39], v13, s[36:39], s58 offen sc1")
A("s_mov_b32 exec_lo, 1\ns_mov_b32 exec_hi, 1")
A("buffer_store_dwordx4 v[32:35], v14, s[36:39], s59 offen sc1")
A("s_mov_b64 exec, -1")
A("s_cmp_lg_u32 s30, 3\ns_cbranch_scc1 L_A_nohint")
A("buffer_store_short v11, v1, s[36:39], s47 offen sc1")
A("L_A_nohint:")
stamp(4)
A("L_H2:")
A("s_lshl_b32 s44, s28, 3\ns_lshr_b32 s46, s29, 2\ns_add_u32 s44, s44, s46")
A(f"s_lshr_b32 s45, s44, 1\ns_lshl_b32 s58, s45, 14\ns_and_b32 s46, s44, 1\ns_lshl_b32 s46, s46, 8\ns_add_u32 s58, s58, s46\ns_lshl_b32 s46, s30, 6\ns_add_u32 s58, s58, s46\ns_add_u32 s58, s58, {AP}")
A(f"s_add_u32 s44, s58, {16*512}")
A(f"s_lshl_b32 s47, s45, 9\ns_add_u32 s47, s47, {ML}")
A(f"s_lshl_b32 s48, s2, 8\ns_add_u32 s48, s48, {HINT+64}")
A("v_lshrrev_b32 v4, 2, v0\nv_and_b32 v5, 3, v0\nv_lshlrev_b32 v8, 9, v4\nv_lshl_add_u32 v8, v5, 4, v8\nv_lshlrev_b32 v9, 4, v4")
A("s_lshl_b32 s46, s30, 5\nv_lshlrev_b32 v10, 3, v5\nv_add_u32 v10, s46, v10\nv_mov_b32 v15, 1")
hint_wait(48, 16)
stamp(6)
gather_loop(["buffer_load_dwordx4 v[24:27], v9, s[36:39], s47 offen sc1",
             "buffer_load_dwordx4 v[28:31], v9, s[36:39], s47 offen offset:256 sc1",
             "buffer_load_dwordx4 v[32:35], v8, s[36:39], s58 offen sc1",
             "buffer_load_dwordx4 v[36:39], v8, s[36:39], s44 offen sc1"], [24, 28, 32, 36], 12, 13, 14, 11)
A("v_and_b32 v24, 0xffffff00, v24\nv_and_b32 v28, 0xffffff00, v28\nv_max_f32 v12, v24, v28")
A(f"v_max_f32_dpp v12, v12, v12 row_ror:4 {DPPM}\nv_max_f32_dpp v12, v12, v12 row_ror:8 {DPPM}")
swapadd(12, 13, 16, "v_max_f32"); swapadd(12, 13, 32, "v_max_f32")
A(f"s_mov_b32 s61, {LOG2E:#x}")
A("v_sub_f32 v24, v24, v12\nv_sub_f32 v28, v28, v12\nv_mul_f32 v24, s61, v24\nv_mul_f32 v28, s61, v28\nv_exp_f32 v24, v24\nv_exp_f32 v28, v28")
A("v_mul_f32 v40, v24, v25")
for k in range(4): A(f"v_mul_f32 v{41+k}, v24, v{32+k}")
A("v_fmac_f32 v40, v28, v29")
for k in range(4): A(f"v_fmac_f32 v{41+k}, v28, v{36+k}")
for m in ("row_ror:4", "row_ror:8"):
    for k in range(5): A(f"v_add_f32_dpp v{40+k}, v{40+k}, v{40+k} {m} {DPPM}")
for wh in (16, 32):
    for k in range(5): A(f"v_mov_b32 v{46+k}, v{40+k}")
    for k in range(5): A(f"v_permlane{wh}_swap_b32 v{46+k}, v{40+k}")
    for k in range(5): A(f"v_add_f32 v{40+k}, v{40+k}, v{46+k}")
A("v_rcp_f32 v40, v40")
for k in range(4): A(f"v_mul_f32 v{41+k}, v{41+k}, v40")
A("v_cvt_pk_bf16_f32 v46, v41, v42\nv_cvt_pk_bf16_f32 v47, v43, v44")
A(f"s_mov_b64 exec, 0xf\nds_write_b64 v10, v[46:47] offset:{L_OV}")
A(f"s_mov_b64 exec, 1\ns_waitcnt lgkmcnt(0)\nds_add_u32 v7, v15 offset:{L_CO}\ns_mov_b64 exec, -1")
stamp(7)
finish()
A("L_G3:")
A("s_setprio 1")
A("v_lshlrev_b32 v4, 2, v0\nds_write_b32 v4, v7")
A("s_lshl_b32 s44, s28, 3\ns_lshr_b32 s46, s29, 2\ns_add_u32 s44, s44, s46")
A("s_and_b32 s45, s29, 3")
if P["prefetch"]:
    A("s_getpc_b64 s[40:41]\nL_pc:")
    A(f"s_sub_u32 s40, s40, L_pc-{KN}_kernel\ns_subb_u32 s41, s41, 0")
    A(f"s_mov_b32 s42, L_code_end-{KN}_kernel\ns_mov_b32 s43, 0x20000")
    A("v_lshlrev_b32 v4, 4, v0\ns_lshl_b32 s46, s30, 10")
    for i in range(3):
        A(f"buffer_load_dwordx4 v[40:43], v4, s[40:43], s46 offen")
        if i < 2: A("s_add_u32 s46, s46, 4096")
A("s_waitcnt lgkmcnt(0)")
tag_load()
A("s_waitcnt lgkmcnt(0)")
A("s_barrier")
srd(36, 26, WS_USED)
srd(40, 4, 2048)
A("s_lshl_b32 s46, s2, 3\nbuffer_load_dwordx2 v[16:17], v7, s[40:43], s46 offen")
selectors(SEL, 8, 9, 10)
srd(32, 20, 7 << 20); srd(40, 12, 8 << 20)
A("s_lshl_b32 s46, s45, 9\ns_lshl_b32 s47, s30, 7\ns_add_u32 s46, s46, s47")
A(f"s_mul_i32 s47, s44, {56*2048}\ns_add_u32 s47, s47, s46")
A("s_lshl_b32 s48, s44, 17\ns_add_u32 s48, s48, s46")
A("v_lshlrev_b32 v4, 11, v2\nv_lshl_add_u32 v4, v3, 4, v4")
A("v_lshlrev_b32 v5, 14, v2\nv_lshl_add_u32 v5, v3, 4, v5")
A("v_lshlrev_b32 v12, 4, v2")
get_tag()
tag_sel_setup(); chk_sel_setup()
A("v_mov_b32 v11, s31")
A("v_bfe_u32 v8, v0, 4, 1\nv_lshl_add_u32 v8, v3, 1, v8\nv_lshlrev_b32 v13, 10, v8")
A(f"s_lshl_b32 s58, s45, 16\ns_lshl_b32 s46, s30, 14\ns_add_u32 s58, s58, s46\ns_lshl_b32 s46, s44, 4\ns_add_u32 s58, s58, s46\ns_add_u32 s58, s58, {OP}")
A(f"s_lshl_b32 s59, s2, 10\ns_add_u32 s59, s59, {OP}\nv_lshlrev_b32 v14, 4, v0")
A("s_lshl_b32 s46, s30, 2\nv_mov_b32 v6, s46")
A("s_waitcnt vmcnt(0)")
lds_wait(6, L_F2, 1, 8)
stamp(1)
dF = P["dF"]
for t in range(15):
    if t >= dF: A(f"s_waitcnt vmcnt({dF-1})")
    if t < 7:
        A(f"buffer_load_dwordx4 v[{W+4*t}:{W+4*t+3}], v4, s[32:35], s47 offen {pol}")
        if t < 6: A(f"s_add_u32 s47, s47, {8*2048}")
    else:
        tt = t - 7
        A(f"buffer_load_dwordx4 v[{W+4*t}:{W+4*t+3}], v5, s[40:43], s48 offen offset:{2048*(tt&1)} {pol}")
        if tt & 1: A("s_add_u32 s48, s48, 4096")
stamp(2)
lds_wait(7, L_FH, 1, 8, sleep=0)
A(f"ds_read_b128 v[20:23], v12 offset:{L_HV}\ns_waitcnt lgkmcnt(0)")
stamp(3)
build_op(OPB, 20, 0, SEL)
for t in range(7):
    if t < 6: build_op(OPB + 4 * ((t + 1) & 1), 20, t + 1, SEL)
    A(f"s_waitcnt vmcnt({14-t})")
    o = OPB + 4 * (t & 1)
    A(f"v_mfma_f32_16x16x32_bf16 v[{ACC}:{ACC+3}], v[{o}:{o+3}], v[{W+4*t}:{W+4*t+3}], {'0' if t == 0 else f'v[{ACC}:{ACC+3}]'}")
lds_wait(7, L_CO, 4, 8, sleep=0)
A(f"ds_read_b128 v[20:23], v12 offset:{L_OV}\ns_waitcnt lgkmcnt(0)")
stamp(4)
build_op(OPB, 20, 0, SEL)
for t in range(8):
    if t < 7: build_op(OPB + 4 * ((t + 1) & 1), 20, t + 1, SEL)
    A(f"s_waitcnt vmcnt({7-t})")
    o = OPB + 4 * (t & 1); w = W + 4 * (7 + t)
    A(f"v_mfma_f32_16x16x32_bf16 v[{ACC}:{ACC+3}], v[{o}:{o+3}], v[{w}:{w+3}], v[{ACC}:{ACC+3}]")
for k in range(4): A(f"v_mov_b32 v{24+k}, v{ACC+k}")
for k in range(4): A(f"v_permlane32_swap_b32 v{24+k}, v{ACC+k}")
for k in range(4): A(f"v_add_f32_dpp v{24+k}, v{ACC+k}, v{24+k} row_ror:8 {DPPM}")
tag_insert(24, 4, 11)
A("s_mov_b64 exec, 0x00ff00ff")
A("buffer_store_dwordx4 v[24:27], v13, s[36:39], s58 offen sc1")
A("s_mov_b64 exec, -1")
stamp(5)
A("s_cmp_lg_u32 s30, 0\ns_cbranch_scc1 L_fin3")
gather_loop(["buffer_load_dwordx4 v[28:31], v14, s[36:39], s59 offen sc1"], [28], 8, 9, 10, 11)
stamp(6)
for m in ("quad_perm:[1,0,3,2]", "quad_perm:[2,3,0,1]", "row_half_mirror", "row_mirror"):
    for k in range(4): A(f"v_add_f32_dpp v{28+k}, v{28+k}, v{28+k} {m} {DPPM}")
for wh in (16, 32):
    for k in range(4): A(f"v_mov_b32 v{32+k}, v{28+k}")
    for k in range(4): A(f"v_permlane{wh}_swap_b32 v{32+k}, v{28+k}")
    for k in range(4): A(f"v_add_f32 v{28+k}, v{28+k}, v{32+k}")
A("v_lshlrev_b32 v32, 16, v16\nv_and_b32 v33, 0xffff0000, v16\nv_lshlrev_b32 v34, 16, v17\nv_and_b32 v35, 0xffff0000, v17")
for k in range(4): A(f"v_add_f32 v{28+k}, v{28+k}, v{32+k}")
A("v_cvt_pk_bf16_f32 v28, v28, v29\nv_cvt_pk_bf16_f32 v29, v30, v31")
srd(40, 22, 2048)
A("s_lshl_b32 s46, s2, 3\ns_mov_b64 exec, 1\nbuffer_store_dwordx2 v[28:29], v7, s[40:43], s46 offen")
A("s_cmp_lg_u32 s2, 0\ns_cbranch_scc1 L_noep")
A(f"s_mov_b32 s46, {EPB}\nbuffer_store_dword v11, v7, s[36:39], 0 offen offset:{EPA}\nbuffer_store_dword v11, v7, s[36:39], s46 offen")
if P["tfix"]:
    A(f"L_tf:\ns_memrealtime s[92:93]\ns_waitcnt lgkmcnt(0)\ns_sub_u32 s46, s92, s94\ns_cmp_lt_u32 s46, {P['tfix']}\ns_cbranch_scc1 L_tf")
A("L_noep:")
stamp(7)
A("L_fin3:")
if P["stamps"]:
    A("L_stamps:")
    A("s_mov_b64 exec, 1\ns_waitcnt lgkmcnt(0)")
    srd(36, 26, WS_USED)
    A(f"s_lshl_b32 s46, s2, 4\ns_add_u32 s46, s46, s3\ns_lshl_b32 s46, s46, 5\ns_add_u32 s46, s46, {STAMP}")
    for i in range(8): A(f"v_mov_b32 v{24+i}, s{80+2*i}")
    A("buffer_store_dwordx4 v[24:27], v7, s[36:39], s46 offen\nbuffer_store_dwordx4 v[28:31], v7, s[36:39], s46 offen offset:16")
A("L_end:\ns_endpgm")
A("L_code_end:")
A.L = hazard.fix(A.L)
A.footer(124, 96)
A.L.insert(A.L.index(".end_amdhsa_kernel"), "  .amdhsa_float_denorm_mode_32 3")
A.write(OUT)
```

```python
import sys
from asmlib import *
import hazard

P = dict(stamps=0, pol="nt", D=5, DY=5, DF=5, B0=5, spin=400000, prefetch=1, hsleep=1, tfix=0, free=0,
         nopub=0, nogather=0, nopoll=0)
for a in sys.argv[2:]:
    k, v = a.split("=")
    assert k in P, k
    P[k] = v if k == "pol" else int(v)
OUT = sys.argv[1]
LSPIN = P["spin"] * 4
if P["free"]: P["spin"] = 1

EPA, ML, QP, AP, GP, OP, HINT, EPB, STAMP = 0x0, 0x1000, 0x5000, 0x15000, 0x95000, 0xB1000, 0x100000, 0x200000, 0x240000
WS_USED = 0x300000
L_FX, L_TAG, L_CQ, L_CG, L_CK, L_CV, L_CQR, L_CA2, L_CO, L_FH, L_CI = 0, 4, 8, 12, 16, 32, 48, 52, 56, 60, 64
L_MX, L_LX = 0x100, 0x180
L_XN, L_OV = 0x400, 0xC00
L_REDQ, L_REDG, L_Q, L_K, L_V = 0xE00, 0x1600, 0x1E00, 0x3000, 0xB000
LDS_BYTES = 0x13000
DPPM = "row_mask:0xf bank_mask:0xf"
LOG2E = 0x3fb8aa3b
SCALE = 0x3db504f3

A = Asm()
A.header(256, 1024, LDS_BYTES)
_uid = [0]
def lab(p):
    _uid[0] += 1
    return f"L_{p}_{_uid[0]}"
def stamp(i):
    if P["stamps"]: A(f"s_memrealtime s[{80+2*i}:{81+2*i}]")
def srd(d, base, size):
    A(f"s_mov_b32 s{d}, s{base}\ns_mov_b32 s{d+1}, s{base+1}\ns_mov_b32 s{d+2}, {size:#x}\ns_mov_b32 s{d+3}, 0x20000")
def lds_wait(vaddr, off, val, vt, sleep=1):
    l = lab("lw"); e = lab("lwd")
    A(f"s_mov_b32 s60, {LSPIN}")
    A(f"{l}:\nds_read_b32 v{vt}, v{vaddr} offset:{off}\ns_waitcnt lgkmcnt(0)\nv_readfirstlane_b32 s61, v{vt}")
    A(f"s_cmp_ge_u32 s61, {val}\ns_cbranch_scc1 {e}")
    if sleep: A(f"s_sleep {sleep}")
    A(f"s_sub_u32 s60, s60, 1\ns_cmp_lg_u32 s60, 0\ns_cbranch_scc1 {l}\n{e}:")
VT = 11
def hint_wait(loads):
    l = lab("hw"); e = lab("hwd")
    A("s_and_b32 s56, s31, 0xff\ns_mul_i32 s56, s56, 0x01010101")
    A(f"s_mov_b32 s60, {P['spin']}")
    A(f"{l}:")
    for i, (b, o) in enumerate(loads): A(f"s_load_dword s{64+i}, s[{b}:{b+1}], {o} glc")
    A("s_waitcnt lgkmcnt(0)")
    for i in range(len(loads)):
        A(f"s_xor_b32 s{64+i}, s{64+i}, s56")
        if i: A(f"s_or_b32 s64, s64, s{64+i}")
    A(f"s_cbranch_scc0 {e}")
    if P["hsleep"]: A(f"s_sleep {P['hsleep']}")
    A(f"s_sub_u32 s60, s60, 1\ns_cmp_lg_u32 s60, 0\ns_cbranch_scc1 {l}\n{e}:")
def tag_insert(vreg, n):
    for k in range(n): A(f"v_perm_b32 v{vreg+k}, v{vreg+k}, v{VT}, s{52+(k&3)}")
def tag_check(bases, vt0, vt1, vacc):
    first = True
    for b in bases:
        A(f"v_perm_b32 v{vt0}, v{b+1}, v{b}, s50\nv_perm_b32 v{vt1}, v{b+3}, v{b+2}, s51")
        if first:
            A(f"v_bitop3_b32 v{vacc}, v{vt0}, v{vt1}, v{VT} bitop3:0x56"); first = False
        else:
            A(f"v_bitop3_b32 v{vt0}, v{vt0}, v{vt1}, v{VT} bitop3:0x56\nv_or_b32 v{vacc}, v{vacc}, v{vt0}")
def gather_loop(loads, bases, vt0, vt1, vacc, sleep=0):
    l = lab("gl"); e = lab("gld")
    A(f"s_mov_b32 s60, {P['spin']}")
    A(f"{l}:")
    for x in loads: A(x)
    A("s_waitcnt vmcnt(0)")
    tag_check(bases, vt0, vt1, vacc)
    A(f"v_cmp_ne_u32 vcc, 0, v{vacc}")
    A(f"s_and_b64 exec, exec, vcc\ns_cbranch_scc0 {e}")
    if sleep: A(f"s_sleep {sleep}")
    A(f"s_sub_u32 s60, s60, 1\ns_cmp_lg_u32 s60, 0\ns_cbranch_scc1 {l}\n{e}:")
    A("s_mov_b64 exec, -1")
def swapadd(v, t, which, op="v_add_f32"):
    A(f"v_mov_b32 v{t}, v{v}\nv_permlane{which}_swap_b32 v{t}, v{v}\n{op} v{v}, v{v}, v{t}")
def swapadd_n(v, t, n, which, op="v_add_f32"):
    for k in range(n): A(f"v_mov_b32 v{t+k}, v{v+k}")
    for k in range(n): A(f"v_permlane{which}_swap_b32 v{t+k}, v{v+k}")
    for k in range(n): A(f"{op} v{v+k}, v{v+k}, v{t+k}")
def allsum(v, t):
    for m in ("quad_perm:[1,0,3,2]", "quad_perm:[2,3,0,1]", "row_half_mirror", "row_mirror"):
        A(f"v_add_f32_dpp v{v}, v{v}, v{v} {m} {DPPM}")
    swapadd(v, t, 16); swapadd(v, t, 32)
def bf16r(v):
    A(f"v_cvt_pk_bf16_f32 v{v}, v{v}, v{v}\nv_lshlrev_b32 v{v}, 16, v{v}")
def lds_inc(off, wait=True, va=7):
    A("s_mov_b64 exec, 1" + ("\ns_waitcnt lgkmcnt(0)" if wait else "") + f"\nds_add_u32 v{va}, v15 offset:{off}\ns_mov_b64 exec, -1")
def finish():
    A("s_branch L_stamps" if P["stamps"] else "s_endpgm")
def common_regs():
    srd(36, 26, WS_USED)
    for k in range(4): A(f"s_mov_b32 s{52+k}, {0x07060500+k:#x}")
    A("s_mov_b32 s50, 0x0c0c0400\ns_mov_b32 s51, 0x04000c0c")
def get_tag():
    A(f"ds_read_b32 v{VT}, v7 offset:{L_TAG}\ns_waitcnt lgkmcnt(0)\nv_readfirstlane_b32 s31, v{VT}")
def gate():
    A("s_barrier"); get_tag()
def own_hint_base(extra=0):
    A(f"s_lshl_b32 s62, s2, 12\ns_add_u32 s62, s62, {HINT}")
    if extra is None: A("s_add_u32 s62, s62, s61")
    elif extra: A(f"s_add_u32 s62, s62, {extra}")
    A("s_add_u32 s62, s26, s62\ns_addc_u32 s63, s27, 0")
pol = P["pol"]
D = P["D"]; DF = P["DF"]
XPQ, XPG, SEL, OPB, ACC, QW, FW = 16, 20, 32, 40, 48, 52, 52
DY = P["DY"]; B0 = P["B0"]
def sync0():
    A("s_waitcnt lgkmcnt(0)\ns_barrier")
def build_op(dst, xp, t):
    for d in range(4):
        A(f"v_perm_b32 v{dst+d}, v{xp+(t>>1)}, v{xp+(t>>1)}, v{SEL+2*d+(t&1)}")
def mfma(op, w, first):
    A(f"v_mfma_f32_16x16x32_bf16 v[{ACC}:{ACC+3}], v[{op}:{op+3}], v[{w}:{w+3}], {'0' if first else f'v[{ACC}:{ACC+3}]'}")
def red_write(base, cnt):
    A("s_mov_b32 exec_lo, 0x00ff00ff\ns_mov_b32 exec_hi, 0xff00ff00")
    A(f"ds_write_b128 v1, v[{ACC}:{ACC+3}] offset:{base}")
    lds_inc(cnt, wait=False)

A("s_cmp_ge_u32 s2, 256\ns_cbranch_scc1 L_end")
A("s_load_dwordx16 s[4:19], s[0:1], 0\ns_load_dwordx8 s[20:27], s[0:1], 64")
A("v_lshrrev_b32 v1, 6, v0\nv_and_b32 v0, 63, v0\nv_readfirstlane_b32 s3, v1")
A("v_mov_b32 v7, 0\nv_mov_b32 v15, 1\ns_add_u32 s3, s3, 12\ns_and_b32 s3, s3, 15")
if P["stamps"]:
    for i in range(1, 8): A(f"s_mov_b32 s{80+2*i}, 0")
stamp(0)
if P["tfix"]: A("s_memrealtime s[94:95]")
A("s_and_b32 s28, s2, 7\ns_lshr_b32 s29, s2, 3\ns_lshr_b32 s30, s2, 4\ns_and_b32 s44, s3, 3")
A("v_lshrrev_b32 v2, 3, v0\nv_and_b32 v3, 7, v0\ns_mov_b32 s35, 0x20000\ns_mov_b32 s43, 0x20000")
A("s_cmp_lt_u32 s3, 4\ns_cbranch_scc1 L_S")
A("s_cmp_eq_u32 s3, 12\ns_cbranch_scc1 L_x")
A("s_cmp_lg_u32 s3, 13\ns_cbranch_scc1 L_other")
if P["prefetch"]:
    A("s_getpc_b64 s[40:41]\nL_pc:")
    A(f"s_mov_b32 s42, L_code_end-L_pc\nv_lshlrev_b32 v4, 7, v0\ns_movk_i32 s46, 0x2000")
    A("buffer_load_dword v40, v4, s[40:43], 0 offen\nbuffer_load_dword v40, v4, s[40:43], s46 offen")
A("s_branch L_other")
A("L_x:")
A("s_setprio 3")
A("v_lshlrev_b32 v5, 5, v0\ns_movk_i32 s42, 2048")
A("s_waitcnt lgkmcnt(0)\ns_mov_b32 s40, s4\ns_mov_b32 s41, s5")
A("buffer_load_dwordx4 v[16:19], v5, s[40:43], 0 offen\nbuffer_load_dwordx4 v[20:23], v5, s[40:43], 0 offen offset:16")
A("s_branch L_ln")
A("L_S:")
A("s_setprio 3")
A("s_and_b32 s45, s29, 3\ns_lshl_b32 s48, s45, 8\ns_lshl_b32 s46, s44, 6\ns_add_u32 s48, s48, s46")
A("s_lshl_b32 s47, s28, 3\ns_lshr_b32 s46, s29, 2\ns_add_u32 s47, s47, s46\ns_lshl_b32 s47, s47, 7")
A(f"s_lshl_b32 s46, s48, 13\ns_add_u32 s60, s47, s46\ns_mov_b32 s38, {8<<20:#x}\ns_mov_b32 s39, 0x20000")
A("v_lshlrev_b32 v4, 16, v2\nv_lshl_add_u32 v4, v3, 4, v4")
A("s_waitcnt lgkmcnt(0)")
A("s_mov_b32 s36, s10\ns_mov_b32 s37, s11")
def q_issue(t):
    def f():
        A(f"buffer_load_dwordx4 v[{QW+4*t}:{QW+4*t+3}], v4, s[36:39], s60 offen {pol}")
        if t < 7: A("s_add_u32 s60, s60, 0x2000")
    return f
assert B0 <= 8
for t in range(B0): q_issue(t)()
stamp(1)
A("s_lshr_b32 s46, s30, 1\ns_add_u32 s47, s46, 1\ns_cmp_eq_u32 s47, 7\ns_cselect_b32 s47, 0, s47")
A("s_cmp_ge_u32 s44, 2\ns_cselect_b32 s46, s47, s46\ns_cselect_b32 s32, s18, s16\ns_cselect_b32 s33, s19, s17")
A("s_mul_i32 s47, s28, 7\ns_add_u32 s46, s46, s47\ns_lshl_b32 s49, s46, 7")
A(f"s_cmp_ge_u32 s30, 14\ns_cselect_b32 s34, 0, {7<<20:#x}")
A(f"v_mul_u32_u24 v5, {8*7168}, v2\nv_lshl_add_u32 v5, v3, 4, v5")
A("s_and_b32 s45, s30, 1\ns_lshl_b32 s45, s45, 1\ns_and_b32 s46, s44, 1\ns_add_u32 s45, s45, s46")
A("s_lshl_b32 s56, s28, 2\ns_lshr_b32 s46, s30, 2\ns_add_u32 s56, s56, s46")
A("s_and_b32 s46, s30, 3\ns_lshl_b32 s57, s46, 9\ns_lshl_b32 s46, s44, 7\ns_add_u32 s57, s57, s46")
A("s_bitcmp1_b32 s29, 0\ns_cbranch_scc1 L_SY")

def post_burst(ng, D):
    A("v_and_b32 v16, 1, v3\nv_cmp_eq_u32 vcc, 1, v16")
    A("v_mov_b32 v16, 0x0c0c0100\nv_mov_b32 v17, 0x01000c0c\nv_cndmask_b32 v16, v16, v17, vcc")
    A("v_mov_b32 v17, 0x0c0c0302\nv_mov_b32 v18, 0x03020c0c\nv_cndmask_b32 v17, v17, v18, vcc")
    A("v_lshrrev_b32 v18, 1, v3\nv_mov_b32 v19, 0x0c0c0c0c")
    for d in range(4):
        A(f"v_cmp_eq_u32 vcc, {d}, v18")
        A(f"v_cndmask_b32 v{SEL+2*d}, v19, v16, vcc\nv_cndmask_b32 v{SEL+2*d+1}, v19, v17, vcc")
    A("v_bfe_u32 v16, v0, 4, 1\nv_lshl_add_u32 v16, v3, 1, v16\nv_lshrrev_b32 v1, 5, v0\nv_lshlrev_b32 v1, 8, v1\nv_lshl_add_u32 v1, v16, 4, v1")
    A("s_lshl_b32 s46, s44, 9\nv_add_u32 v1, s46, v1")
    A(f"s_lshl_b32 s48, s48, 1\ns_lshl_b32 s59, s59, 1\nv_lshlrev_b32 v{OPB}, 4, v2\nv_add_u32 v{OPB+1}, s59, v{OPB}\nv_add_u32 v{OPB}, s48, v{OPB}")
    A("s_barrier")
    stamp(2)
    A(f"ds_read_b128 v[{XPQ}:{XPQ+3}], v{OPB} offset:{L_XN}")
    for g in range(ng): A(f"ds_read_b128 v[{XPG+4*g}:{XPG+4*g+3}], v{OPB+1} offset:{L_XN+128*g}")
    A("s_waitcnt lgkmcnt(0)")

def run_stream(seq, pre):
    n = len(seq); nextp = 0
    for k in range(pre, n):
        dd = seq[k][2]
        while nextp < k - dd:
            if seq[nextp][1]:
                A(f"s_waitcnt vmcnt({k-1-nextp})"); seq[nextp][1]()
            nextp += 1
        A(f"s_waitcnt vmcnt({dd-1})")
        seq[k][0]()
        while nextp <= k - dd:
            if seq[nextp][1]: seq[nextp][1]()
            nextp += 1
    while nextp < n:
        if seq[nextp][1]:
            A(f"s_waitcnt vmcnt({n-1-nextp})"); seq[nextp][1]()
        nextp += 1
def q_proc(t):
    def f():
        build_op(OPB + 4 * (t & 1), XPQ, t)
        mfma(OPB + 4 * (t & 1), QW + 4 * t, t == 0)
        if t == 7:
            red_write(L_REDQ, L_CQ); stamp(3)
    return f
def qseq(d): return [[q_issue(t), q_proc(t), d] for t in range(8)]

A("s_mul_i32 s59, s45, 192\ns_mul_i32 s47, s59, 7168\ns_add_u32 s47, s47, s49")
def gslot(g): return FW + 4 * (8 + g % 8)
def g_issue(g, n, slot):
    def f():
        A(f"buffer_load_dwordx4 v[{slot}:{slot+3}], v5, s[32:35], s47 offen {pol}")
        if g < n - 1: A(f"s_add_u32 s47, s47, {7168 if g % 8 != 7 else 57*7168}")
    return f
def g_proc(g, n, slot, first_extra=None):
    def f():
        if first_extra: first_extra()
        build_op(OPB + 4 * (g & 1), XPG + 4 * (g // 8), g % 8)
        mfma(OPB + 4 * (g & 1), slot, g == 0)
        if g == n - 1: g_done()
    return f
def f_issue(t, last):
    def f():
        A(f"buffer_load_dwordx4 v[{FW+4*t}:{FW+4*t+3}], v6, s[40:43], s58 offen offset:{2048*(t&1)} {pol}")
        if t & 1 and t < last: A("s_add_u32 s58, s58, 4096")
    return f
def g_done():
    red_write(L_REDG, L_CG); stamp(4)
def q_done():
    red_write(L_REDQ, L_CQ)
seq = [[g_issue(g, 24, gslot(g)), g_proc(g, 24, gslot(g)), D] for g in range(24)]
seq += [[f_issue(t, 15), None, DF] for t in range(16)]
for t in range(D): seq[24+t][2] = D
seq = qseq(D) + seq
A(f"s_mov_b32 s40, s12\ns_mov_b32 s41, s13\ns_mov_b32 s42, {8<<20:#x}\ns_lshl_b32 s58, s56, 18\ns_add_u32 s58, s58, s57")
A("v_lshlrev_b32 v6, 15, v2\nv_lshl_add_u32 v6, v3, 4, v6")
post_burst(3, D)
run_stream(seq, B0)
A(f"s_mov_b32 s45, {L_CO}\ns_mov_b32 s46, 4\ns_mov_b32 s49, 0")
A("s_branch L_F")
A("L_SY:")
A("s_lshr_b32 s47, s28, 1\ns_lshl_b32 s47, s47, 23\ns_and_b32 s46, s28, 1\ns_lshl_b32 s46, s46, 4\ns_add_u32 s46, s46, s30\ns_lshl_b32 s46, s46, 15\ns_add_u32 s47, s47, s46")
A(f"s_lshl_b32 s46, s44, 13\ns_add_u32 s58, s47, s46\ns_add_u32 s58, s58, {28672*256}\ns_add_u32 s61, s46, {L_K}")
A("v_lshrrev_b32 v16, 4, v0\nv_and_b32 v17, 15, v0")
A("v_xor_b32 v8, v17, v16\nv_lshlrev_b32 v8, 4, v8\nv_lshl_add_u32 v8, v16, 8, v8")
A("v_xor_b32 v9, 64, v8\nv_xor_b32 v10, 128, v8\nv_xor_b32 v14, 192, v8")
A("v_lshlrev_b32 v12, 1, v16\nv_xor_b32 v12, v17, v12\nv_lshlrev_b32 v12, 4, v12\nv_lshl_add_u32 v12, v16, 8, v12\nv_xor_b32 v13, 128, v12")
A(f"s_mov_b32 s40, s6\ns_mov_b32 s41, s7\ns_mov_b32 s42, {32<<20:#x}")
A("s_lshl_b32 s59, s45, 6\ns_add_u32 s59, s59, 768\ns_mul_i32 s47, s59, 7168\ns_add_u32 s47, s47, s49")
A("s_lshl_b32 s46, s44, 2\nv_mov_b32 v11, s46")
def kv_issue(i):
    def f():
        mat, ii = i // 8, i % 8
        if i == 8: A("s_mov_b32 s40, s8\ns_mov_b32 s41, s9\ns_sub_u32 s58, s58, 8192")
        if ii % 4 == 0:
            A(f"s_add_u32 m0, s61, {(L_V - L_K) * mat + 4096 * (ii // 4)}")
            if i: A("s_add_u32 s58, s58, 4096")
        va = (8, 9, 10, 14)[ii & 3] if mat == 0 else (12 + (ii & 1))
        A(f"buffer_load_dwordx4 v{va}, s[40:43], s58 offen offset:{1024*(ii&3)} {pol} lds")
        if i == 15:
            A(f"s_mov_b32 s40, s20\ns_mov_b32 s41, s21\ns_mov_b32 s42, {7<<20:#x}\ns_mul_i32 s58, s56, {112*2048}\ns_add_u32 s58, s58, s57")
    return f
seq = [[kv_issue(i), None, DY] for i in range(16)]
seq[7][1] = lambda: lds_inc(L_CK, wait=False, va=11)
def v_done():
    lds_inc(L_CV, wait=False, va=11); stamp(5)
seq[15][1] = v_done
seq += [[g_issue(g, 8, gslot(g)), g_proc(g, 8, gslot(g)), D] for g in range(8)]
seq += [[f_issue(t, 15), None, DF] for t in range(2, 16)]
for t in range(D): seq[24+t][2] = D
seq = qseq(DY) + seq
A(f"v_mul_u32_u24 v6, {14*2048}, v2\nv_lshl_add_u32 v6, v3, 4, v6")
post_burst(1, DY)
run_stream(seq, B0)
A(f"s_mov_b32 s45, {L_FH}\ns_mov_b32 s46, 1\ns_mov_b32 s49, 512")
A("L_F:")
stamp(5) if False else None
A(f"s_lshl_b32 s58, s57, 7\ns_lshl_b32 s48, s56, 4\ns_add_u32 s58, s58, s48\ns_add_u32 s58, s58, s49\ns_add_u32 s58, s58, {OP}")
common_regs(); get_tag()
A("v_mov_b32 v6, s45\nv_lshlrev_b32 v5, 5, v2")
A("v_bfe_u32 v10, v0, 4, 1\nv_lshl_add_u32 v12, v3, 1, v10\nv_lshlrev_b32 v13, 10, v12")
for k in range(4): A(f"v_mov_b32 v{ACC+k}, 0")
stamp(6)
lw = lab("jw"); le = lab("jwd")
A(f"s_mov_b32 s60, {LSPIN}")
A(f"{lw}:\nds_read_b32 v10, v6\ns_waitcnt lgkmcnt(0)\nv_readfirstlane_b32 s61, v10\ns_cmp_ge_u32 s61, s46\ns_cbranch_scc1 {le}")
A(f"s_sub_u32 s60, s60, 1\ns_cmp_lg_u32 s60, 0\ns_cbranch_scc1 {lw}\n{le}:")
A(f"ds_read_b128 v[16:19], v5 offset:{L_OV}\nds_read_b128 v[20:23], v5 offset:{L_OV+16}")
A("s_waitcnt lgkmcnt(0)")
A("s_cmp_lg_u32 s49, 0\ns_cbranch_scc1 L_mm2")
for t in range(16):
    if t == 2: A("L_mm2:")
    if t % 2 == 0:
        build_op(OPB, 16, t); build_op(OPB + 4, 16, t + 1)
    if 15 - t < DF: A(f"s_waitcnt vmcnt({15-t})")
    mfma(OPB + 4 * (t & 1), FW + 4 * t, False)
for k in range(4): A(f"v_mov_b32 v{24+k}, v{ACC+k}")
for k in range(4): A(f"v_permlane32_swap_b32 v{24+k}, v{ACC+k}")
for k in range(4): A(f"v_add_f32_dpp v{24+k}, v{ACC+k}, v{24+k} row_ror:8 {DPPM}")
tag_insert(24, 4)
A("s_mov_b64 exec, 0x00ff00ff")
A("buffer_store_dwordx4 v[24:27], v13, s[36:39], s58 offen sc1")
lds_inc(L_CI, wait=False)
stamp(7)
finish()
A("L_ln:")
A("s_setprio 3")
A(f"s_add_u32 s62, s26, {EPB}\ns_addc_u32 s63, s27, 0")
A(f"s_load_dword s31, s[26:27], {EPA}\ns_load_dword s57, s[62:63], 0")
A("s_waitcnt vmcnt(0)")
stamp(1)
for k in range(8): A(f"v_lshlrev_b32 v{24+2*k}, 16, v{16+k}\nv_and_b32 v{25+2*k}, 0xffff0000, v{16+k}")
for k in range(8): A(f"v_add_f32 v{40+k}, v{24+2*k}, v{25+2*k}")
for k in range(4): A(f"v_add_f32 v{40+k}, v{40+k}, v{44+k}")
A("v_add_f32 v40, v40, v42\nv_add_f32 v41, v41, v43\nv_add_f32 v6, v40, v41")
allsum(6, 13)
A("v_mul_f32 v6, 0x3a800000, v6")
for k in range(16): A(f"v_sub_f32 v{40+k}, v{24+k}, v6")
A("v_mul_f32 v10, v40, v40\nv_mul_f32 v12, v41, v41")
for k in range(2, 16): A(f"v_fmac_f32 v{10+2*(k&1)}, v{40+k}, v{40+k}")
A("v_add_f32 v10, v10, v12")
allsum(10, 13)
A("v_mul_f32 v10, 0x3a800000, v10")
bf16r(6); bf16r(10)
A("v_add_f32 v10, 0x3727c5ac, v10")
bf16r(10)
A("v_sqrt_f32 v10, v10")
for k in range(16): A(f"v_sub_f32 v{24+k}, v{24+k}, v6")
bf16r(10)
A("v_rcp_f32 v10, v10")
for k in range(8): A(f"v_cvt_pk_bf16_f32 v{16+k}, v{24+2*k}, v{25+2*k}")
for k in range(8):
    a, b = 24 + 2 * k, 25 + 2 * k
    A(f"v_lshlrev_b32 v{a}, 16, v{16+k}\nv_and_b32 v{b}, 0xffff0000, v{16+k}")
    A(f"v_mul_f32 v{a}, v{a}, v10\nv_mul_f32 v{b}, v{b}, v10")
    A(f"v_cvt_pk_bf16_f32 v{16+k}, v{a}, v{b}")
A(f"ds_write_b128 v5, v[16:19] offset:{L_XN}\nds_write_b128 v5, v[20:23] offset:{L_XN+16}")
A("s_waitcnt lgkmcnt(0)")
A("s_mul_i32 s31, s31, 0x9E3779B5\ns_mul_i32 s57, s57, 0x85EBCA6C\ns_add_u32 s31, s31, s57\ns_add_u32 s31, s31, 0x6A09E667")
A(f"v_mov_b32 v{VT}, s31\nds_write_b32 v7, v{VT} offset:{L_TAG}")
stamp(2)
A("s_waitcnt lgkmcnt(0)\ns_barrier")
common_regs()
A("s_branch L_H3")
A("L_other:")
A("s_setprio 2")
A("v_lshlrev_b32 v4, 2, v0\ns_mov_b64 exec, 0x7ffffffc\nds_write_b32 v4, v7\ns_mov_b64 exec, -1")
A("s_waitcnt lgkmcnt(0)")
common_regs()
A("v_and_b32 v12, 15, v0\nv_lshlrev_b32 v12, 4, v12\nv_lshrrev_b32 v10, 4, v0\nv_lshl_add_u32 v14, v10, 9, v12")
A("s_cmp_lt_u32 s3, 8\ns_cbranch_scc1 L_gath")
A("s_cmp_lt_u32 s3, 12\ns_cbranch_scc1 L_hi")
A("s_cmp_eq_u32 s3, 14\ns_cbranch_scc1 L_Gred")
A("s_cmp_eq_u32 s3, 15\ns_cbranch_scc1 L_HG")
A(f"s_lshl_b32 s58, s28, 5\ns_add_u32 s58, s58, s29\ns_lshl_b32 s45, s58, 8\ns_add_u32 s45, s45, {QP}")
A("v_and_b32 v1, 15, v0\nv_lshlrev_b32 v1, 16, v1\nv_bfe_u32 v5, v0, 4, 1\nv_lshl_add_u32 v1, v5, 12, v1")
A(f"s_andn2_b32 s59, s28, 1\ns_lshl_b32 s59, s59, 12\ns_bfe_u32 s46, s58, 0x40002\ns_lshl_b32 s46, s46, 7\ns_add_u32 s59, s59, s46\ns_and_b32 s46, s58, 3\ns_add_u32 s59, s59, s46\ns_add_u32 s59, s59, {HINT+8*4096}")
gate()
lds_wait(7, L_CQ, 4, 13, sleep=0)
A(f"ds_read_b128 v[24:27], v14 offset:{L_REDQ}\nds_read_b128 v[28:31], v14 offset:{L_REDQ+256}\ns_waitcnt lgkmcnt(0)")
for k in range(4): A(f"v_add_f32 v{24+k}, v{24+k}, v{28+k}")
swapadd_n(24, 28, 4, 16); swapadd_n(24, 28, 4, 32)
tag_insert(24, 4)
A("s_mov_b64 exec, 0xffff")
A("buffer_store_dwordx4 v[24:27], v12, s[36:39], s45 offen sc1")
A("s_mov_b32 exec_lo, -1")
A(f"buffer_store_byte v{VT}, v1, s[36:39], s59 offen sc1")
A("s_mov_b64 exec, -1")
stamp(3)
finish()
A("L_gath:")
A("s_bitcmp1_b32 s29, 0\ns_cbranch_scc0 L_H2")
A(f"s_lshr_b32 s45, s28, 1\ns_lshl_b32 s58, s45, 14\ns_lshl_b32 s46, s44, 12\ns_add_u32 s58, s58, s46\ns_add_u32 s58, s58, {QP}")
A("v_lshl_add_u32 v8, v10, 10, v12")
A("v_lshrrev_b32 v9, 1, v10\nv_mul_u32_u24 v9, 272, v9\nv_and_b32 v10, 1, v10\nv_lshl_add_u32 v9, v10, 7, v9\nv_lshrrev_b32 v10, 1, v12\nv_add_u32 v9, v9, v10\ns_mul_i32 s61, s44, 544\nv_add_u32 v9, s61, v9")
A("s_lshl_b32 s61, s44, 9")
own_hint_base(None)
gate()
lds_wait(7, L_CQ, 4, 13, sleep=2)
hint_wait([(62, 128 * i) for i in range(4)])
stamp(4)
gather_loop([f"buffer_load_dwordx4 v[{24+4*k}:{27+4*k}], v8, s[36:39], s58 offen offset:{256*k} sc1" for k in range(4)], [24, 28, 32, 36], 4, 5, 6)
for k in range(4): A(f"v_add_f32 v{24+k}, v{24+k}, v{28+k}\nv_add_f32 v{32+k}, v{32+k}, v{36+k}")
for k in range(4): A(f"v_add_f32 v{24+k}, v{24+k}, v{32+k}")
A("v_cvt_pk_bf16_f32 v24, v24, v25\nv_cvt_pk_bf16_f32 v25, v26, v27")
A(f"ds_write_b64 v9, v[24:25] offset:{L_Q}")
lds_inc(L_CQR, wait=False)
stamp(5)
finish()
A("L_HG:")
A("s_bitcmp1_b32 s29, 0\ns_cbranch_scc0 L_idle")
A("s_lshr_b32 s45, s30, 2\ns_mul_i32 s46, s45, 112")
A("v_lshrrev_b32 v8, 1, v0\nv_min_u32 v8, 27, v8\nv_lshl_add_u32 v8, v8, 2, s46")
A("v_lshrrev_b32 v9, 6, v8\nv_and_b32 v8, 63, v8\nv_lshlrev_b32 v8, 2, v8\nv_lshl_add_u32 v8, v9, 11, v8\nv_and_b32 v9, 1, v0\nv_lshl_add_u32 v8, v9, 8, v8")
A(f"s_mul_i32 s58, s28, {7*2048}\ns_add_u32 s58, s58, {GP}")
A("v_mul_u32_u24 v10, 37, v0\nv_lshrrev_b32 v10, 8, v10\nv_add_u32 v10, v10, v0\nv_lshlrev_b32 v10, 2, v10")
A("s_lshl_b32 s61, s45, 1\ns_sub_u32 s61, s61, 1\ns_max_i32 s61, s61, 0\ns_min_u32 s61, s61, 4\ns_lshl_b32 s61, s61, 7\ns_add_u32 s61, s61, 2048")
own_hint_base(None)
gate()
lds_wait(7, L_CG, 4, 13, sleep=2)
hint_wait([(62, 128 * i) for i in range(4)])
stamp(6)
gather_loop([f"buffer_load_dwordx4 v[{24+4*k}:{27+4*k}], v8, s[36:39], s58 offen offset:{(0,1024,512,1536)[k]} sc1" for k in range(4)], [24, 28, 32, 36], 4, 5, 6)
for k in range(8): A(f"v_add_f32 v{24+k}, v{24+k}, v{32+k}")
for k in range(8): A(f"v_add_f32_dpp v{24+k}, v{24+k}, v{24+k} quad_perm:[1,0,3,2] {DPPM}")
A("v_cmp_eq_u32 vcc, 1, v9")
A("v_cndmask_b32 v24, v24, v26, vcc\nv_cndmask_b32 v25, v25, v27, vcc\nv_cndmask_b32 v28, v28, v30, vcc\nv_cndmask_b32 v29, v29, v31, vcc")
A("v_cvt_pk_bf16_f32 v25, v24, v25\nv_cvt_pk_bf16_f32 v29, v28, v29")
A("v_lshlrev_b32 v24, 16, v25\nv_and_b32 v25, 0xffff0000, v25\nv_lshlrev_b32 v28, 16, v29\nv_and_b32 v29, 0xffff0000, v29")
A(f"v_mul_f32 v26, {(LOG2E ^ 0x80000000):#x}, v24\nv_mul_f32 v27, {(LOG2E ^ 0x80000000):#x}, v25\nv_exp_f32 v26, v26\nv_exp_f32 v27, v27")
A("v_add_f32 v26, 1.0, v26\nv_add_f32 v27, 1.0, v27\nv_rcp_f32 v26, v26\nv_rcp_f32 v27, v27\nv_mul_f32 v24, v24, v26\nv_mul_f32 v25, v25, v27")
A("v_cvt_pk_bf16_f32 v25, v24, v25\nv_lshlrev_b32 v24, 16, v25\nv_and_b32 v25, 0xffff0000, v25")
A("v_mul_f32 v24, v24, v28\nv_mul_f32 v25, v25, v29\nv_cvt_pk_bf16_f32 v24, v24, v25")
A("s_mov_b32 exec_hi, 0x00ffffff")
A(f"ds_write_b32 v10, v24 offset:{L_OV+4}")
lds_inc(L_FH, wait=False)
stamp(7)
A("L_fin4:")
finish()
A("L_Gred:")
A("s_cmp_ge_u32 s30, 14\ns_cbranch_scc1 L_idle")
A("s_lshr_b32 s45, s30, 1\ns_add_u32 s46, s45, 1\ns_cmp_eq_u32 s46, 7\ns_cselect_b32 s46, 0, s46")
A("s_lshl_b32 s47, s45, 11\ns_lshl_b32 s46, s46, 11\ns_add_u32 s46, s46, 1024")
A("v_mov_b32 v13, s47\nv_mov_b32 v5, s46\nv_cmp_le_u32 vcc, 32, v0\nv_cndmask_b32 v13, v13, v5, vcc\nv_add_u32 v13, v13, v12")
A("s_and_b32 s46, s29, 1\ns_lshl_b32 s46, s46, 1\ns_and_b32 s47, s30, 1\ns_add_u32 s46, s46, s47")
A(f"s_mul_i32 s58, s28, {7*2048}\ns_lshl_b32 s47, s46, 8\ns_add_u32 s58, s58, s47\ns_add_u32 s58, s58, {GP}")
A("v_and_b32 v1, 15, v0\nv_lshlrev_b32 v1, 16, v1\nv_bfe_u32 v5, v0, 4, 1\nv_mul_u32_u24 v5, 896, v5\nv_sub_u32 v1, v1, v5\nv_add_u32 v1, 896, v1")
A(f"s_lshl_b32 s59, s28, 12\ns_lshl_b32 s47, s45, 7\ns_add_u32 s59, s59, s47\ns_add_u32 s59, s59, s46\ns_add_u32 s59, s59, {HINT+8*4096+2048+128-896}")
A("s_cmp_eq_u32 s45, 6\ns_cselect_b32 s40, -1, 0xffff")
gate()
lds_wait(7, L_CG, 4, 5, sleep=1)
A(f"ds_read_b128 v[24:27], v14 offset:{L_REDG}\nds_read_b128 v[28:31], v14 offset:{L_REDG+256}\ns_waitcnt lgkmcnt(0)")
for k in range(4): A(f"v_add_f32 v{24+k}, v{24+k}, v{28+k}")
swapadd_n(24, 28, 4, 16)
tag_insert(24, 4)
A("s_mov_b32 exec_lo, 0xffff\ns_mov_b32 exec_hi, 0xffff")
A("buffer_store_dwordx4 v[24:27], v13, s[36:39], s58 offen sc1")
A("s_mov_b32 exec_lo, s40\ns_mov_b32 exec_hi, 0")
A(f"buffer_store_byte v{VT}, v1, s[36:39], s59 offen sc1")
stamp(6)
A("L_fin5:")
finish()
A("L_H2:")
A("s_lshl_b32 s45, s28, 2\ns_lshr_b32 s46, s30, 2\ns_add_u32 s45, s45, s46")
A(f"s_lshl_b32 s58, s45, 14\ns_lshl_b32 s46, s44, 7\ns_add_u32 s58, s58, s46\ns_add_u32 s58, s58, {AP}")
A("s_add_u32 s40, s58, 4096\ns_add_u32 s41, s58, 8192\ns_add_u32 s42, s58, 12288")
A(f"s_lshl_b32 s47, s45, 9\ns_add_u32 s47, s47, {ML}")
A("v_lshlrev_b32 v8, 9, v2\nv_lshl_add_u32 v8, v3, 4, v8\nv_lshlrev_b32 v9, 4, v2")
A("s_lshl_b32 s46, s44, 6\nv_lshlrev_b32 v10, 3, v3\nv_add_u32 v10, s46, v10")
A("s_lshl_b32 s61, s44, 8")
own_hint_base(None)
gate()
hint_wait([(62, 0), (62, 128)])
lds_inc(L_CQR, wait=False)
lds_wait(7, L_CQR, 4, 12, sleep=1)
stamp(4)
gather_loop([f"buffer_load_dwordx4 v[{24+4*k}:{27+4*k}], v9, s[36:39], s47 offen offset:{128*k} sc1" for k in range(4)] +
            [f"buffer_load_dwordx4 v[{40+4*k}:{43+4*k}], v8, s[36:39], s{(58,40,41,42)[k]} offen sc1" for k in range(4)],
            [24, 28, 32, 36, 40, 44, 48, 52], 12, 13, 14)
for k in range(4): A(f"v_and_b32 v{24+4*k}, 0xffffff00, v{24+4*k}")
A("v_max3_f32 v12, v24, v28, v32\nv_max_f32 v12, v12, v36")
A(f"v_max_f32_dpp v12, v12, v12 row_ror:8 {DPPM}")
swapadd(12, 13, 16, "v_max_f32"); swapadd(12, 13, 32, "v_max_f32")
A(f"s_mov_b32 s61, {LOG2E:#x}")
for k in range(4): A(f"v_sub_f32 v{24+4*k}, v{24+4*k}, v12")
for k in range(4): A(f"v_mul_f32 v{24+4*k}, s61, v{24+4*k}")
for k in range(4): A(f"v_exp_f32 v{24+4*k}, v{24+4*k}")
A("v_mul_f32 v56, v24, v25")
for e in range(4): A(f"v_mul_f32 v{57+e}, v24, v{40+e}")
for k in range(1, 4):
    A(f"v_fmac_f32 v56, v{24+4*k}, v{25+4*k}")
    for e in range(4): A(f"v_fmac_f32 v{57+e}, v{24+4*k}, v{40+4*k+e}")
for k in range(5): A(f"v_add_f32_dpp v{56+k}, v{56+k}, v{56+k} row_ror:8 {DPPM}")
swapadd_n(56, 62, 5, 16); swapadd_n(56, 62, 5, 32)
A("v_rcp_f32 v56, v56")
for e in range(4): A(f"v_mul_f32 v{57+e}, v{57+e}, v56")
A("v_cvt_pk_bf16_f32 v62, v57, v58\nv_cvt_pk_bf16_f32 v63, v59, v60")
A(f"s_mov_b64 exec, 0xff\nds_write_b64 v10, v[62:63] offset:{L_OV}")
lds_inc(L_CO, wait=False)
stamp(5)
finish()
A("L_H3:")
srd(40, 4, 2048)
A("s_lshl_b32 s46, s2, 3\nbuffer_load_dwordx2 v[8:9], v7, s[40:43], s46 offen")
A(f"s_lshl_b32 s59, s2, 10\ns_add_u32 s59, s59, {OP}\nv_lshlrev_b32 v14, 4, v0")
A("s_waitcnt vmcnt(0)")
srd(40, 22, 2048)
A("v_lshlrev_b32 v36, 16, v8\nv_and_b32 v37, 0xffff0000, v8\nv_lshlrev_b32 v38, 16, v9\nv_and_b32 v39, 0xffff0000, v9")
lds_wait(7, L_CI, 4, 5, sleep=1)
gather_loop(["buffer_load_dwordx4 v[28:31], v14, s[36:39], s59 offen sc1"], [28], 5, 6, 10)
stamp(6)
for m in ("quad_perm:[1,0,3,2]", "quad_perm:[2,3,0,1]", "row_half_mirror", "row_mirror"):
    for k in range(4): A(f"v_add_f32_dpp v{28+k}, v{28+k}, v{28+k} {m} {DPPM}")
swapadd_n(28, 32, 4, 16)
A("v_cvt_pk_bf16_f32 v28, v28, v29\nv_cvt_pk_bf16_f32 v29, v30, v31\nv_mov_b32 v30, v28\nv_mov_b32 v31, v29")
A("v_permlane32_swap_b32 v28, v30\nv_permlane32_swap_b32 v29, v31")
A("v_lshlrev_b32 v32, 16, v28\nv_and_b32 v33, 0xffff0000, v28\nv_lshlrev_b32 v34, 16, v29\nv_and_b32 v35, 0xffff0000, v29")
for k in range(4): A(f"v_add_f32 v{32+k}, v{32+k}, v{36+k}")
A("v_cvt_pk_bf16_f32 v28, v32, v33\nv_cvt_pk_bf16_f32 v29, v34, v35")
A("v_lshlrev_b32 v32, 16, v28\nv_and_b32 v33, 0xffff0000, v28\nv_lshlrev_b32 v34, 16, v29\nv_and_b32 v35, 0xffff0000, v29")
A("v_lshlrev_b32 v36, 16, v30\nv_and_b32 v37, 0xffff0000, v30\nv_lshlrev_b32 v38, 16, v31\nv_and_b32 v39, 0xffff0000, v31")
for k in range(4): A(f"v_add_f32 v{32+k}, v{32+k}, v{36+k}")
A("v_cvt_pk_bf16_f32 v28, v32, v33\nv_cvt_pk_bf16_f32 v29, v34, v35")
A("s_mov_b64 exec, 1\nbuffer_store_dwordx2 v[28:29], v7, s[40:43], s46 offen")
A("s_cmp_lg_u32 s2, 0\ns_cbranch_scc1 L_noep")
A(f"s_mov_b32 s46, {EPB}\nbuffer_store_dword v{VT}, v7, s[36:39], 0 offen offset:{EPA}\nbuffer_store_dword v{VT}, v7, s[36:39], s46 offen")
if P["tfix"]:
    A(f"L_tf:\ns_memrealtime s[92:93]\ns_waitcnt lgkmcnt(0)\ns_sub_u32 s46, s92, s94\ns_cmp_lt_u32 s46, {P['tfix']}\ns_cbranch_scc1 L_tf")
A("L_noep:")
stamp(7)
finish()
A("L_hi:")
A("s_bitcmp1_b32 s29, 0\ns_cbranch_scc1 L_A2")
A("L_idle:")
A("s_barrier\ns_endpgm")
KR, VR = 40, 72
A("L_A2:")
A("s_lshr_b32 s45, s28, 1\ns_and_b32 s46, s28, 1\ns_lshl_b32 s46, s46, 4\ns_add_u32 s46, s46, s30")
A(f"s_lshl_b32 s49, s44, 13\ns_add_u32 s49, s49, {L_K}")
A("v_lshrrev_b32 v4, 4, v0\nv_and_b32 v5, 15, v0\nv_xor_b32 v6, v5, v4\nv_lshlrev_b32 v6, 4, v6")
A("v_lshl_add_u32 v8, v5, 8, v6\nv_add_u32 v8, s49, v8")
A("v_xor_b32 v9, 64, v8\nv_xor_b32 v10, 128, v8\nv_xor_b32 v14, 192, v8")
A("s_lshl_b32 s48, s44, 2\nv_mov_b32 v22, s48")
A("v_lshrrev_b32 v16, 5, v0\ns_lshl_b32 s48, s44, 1\nv_add_u32 v16, s48, v16")
A("v_and_b32 v17, 31, v0\nv_mul_u32_u24 v18, 528, v16\nv_lshl_add_u32 v18, v17, 4, v18\nv_lshlrev_b32 v19, 4, v16")
A("v_lshlrev_b32 v20, 14, v16\nv_lshl_add_u32 v20, v17, 4, v20\nv_lshlrev_b32 v21, 9, v16")
A(f"s_lshl_b32 s48, s45, 8\ns_add_u32 s48, s48, s46\ns_lshl_b32 s58, s48, 9\ns_add_u32 s58, s58, {AP}\ns_lshl_b32 s59, s48, 4\ns_add_u32 s59, s59, {ML}")
A("v_lshlrev_b32 v1, 16, v5\nv_bfe_u32 v12, v0, 4, 1\nv_lshl_add_u32 v1, v12, 12, v1")
A(f"s_lshl_b32 s47, s45, 13\ns_lshr_b32 s48, s46, 2\ns_lshl_b32 s48, s48, 7\ns_add_u32 s47, s47, s48\ns_and_b32 s48, s46, 3\ns_add_u32 s47, s47, s48\ns_add_u32 s47, s47, {HINT}")
gate()
lds_wait(22, L_CK, 1, 12, sleep=2)
for T in range(2):
    for t in range(4):
        r = KR + 16 * T + 4 * t
        A(f"ds_read_b128 v[{r}:{r+3}], v{(8,9,10,14)[t]} offset:{4096*T}")
A("v_lshrrev_b32 v12, 2, v0")
A("v_and_b32 v13, 7, v12\nv_lshlrev_b32 v13, 1, v13\nv_bfe_u32 v14, v0, 1, 1\nv_xor_b32 v13, v13, v14\nv_lshlrev_b32 v13, 4, v13")
A(f"v_lshl_add_u32 v13, v12, 8, v13\nv_and_b32 v14, 1, v0\nv_lshl_add_u32 v13, v14, 3, v13\ns_add_u32 s48, s49, {L_V-L_K}\nv_add_u32 v13, s48, v13")
A("v_mul_u32_u24 v10, 272, v3\nv_lshl_add_u32 v10, v4, 4, v10")
A("v_mul_u32_u24 v8, 528, v3\nv_lshl_add_u32 v8, v4, 4, v8\nv_add_u32 v8, s49, v8")
A("v_lshl_add_u32 v9, v3, 4, v22")
A(f"s_mov_b32 s48, {SCALE:#x}\ns_mov_b32 s43, {LOG2E:#x}")
stamp(1)
lds_wait(7, L_CQR, 4, 12, sleep=1)
A("s_setprio 3")
stamp(2)
QF = 104
for t in range(4): A(f"ds_read_b128 v[{QF+4*t}:{QF+4*t+3}], v10 offset:{L_Q+64*t}")
S0 = 24
for t in range(4):
    A(f"s_waitcnt lgkmcnt({3-t})" if not P["stamps"] else "s_waitcnt lgkmcnt(0)")
    for T in range(2):
        r = KR + 16 * T + 4 * t; d = S0 + 4 * T
        A(f"v_mfma_f32_16x16x32_bf16 v[{d}:{d+3}], v[{r}:{r+3}], v[{QF+4*t}:{QF+4*t+3}], {'0' if t == 0 else f'v[{d}:{d+3}]'}")
for k in range(0, 8, 2):
    a, b = S0 + k, S0 + k + 1
    A(f"v_cvt_pk_bf16_f32 v{b}, v{a}, v{b}\nv_lshlrev_b32 v{a}, 16, v{b}\nv_and_b32 v{b}, 0xffff0000, v{b}")
    A(f"v_mul_f32 v{a}, s48, v{a}\nv_mul_f32 v{b}, s48, v{b}")
    A(f"v_cvt_pk_bf16_f32 v{b}, v{a}, v{b}\nv_lshlrev_b32 v{a}, 16, v{b}\nv_and_b32 v{b}, 0xffff0000, v{b}")
A("v_max3_f32 v32, v24, v25, v26\nv_max3_f32 v33, v27, v28, v29\nv_max3_f32 v32, v32, v30, v31\nv_max_f32 v32, v32, v33")
swapadd(32, 33, 16, "v_max_f32"); swapadd(32, 33, 32, "v_max_f32")
lds_wait(22, L_CV, 1, 12, sleep=0)
stamp(3)
for dt in range(8):
    r = VR + 4 * dt
    if dt: A(f"v_xor_b32 v12, {32*dt}, v13")
    va = 12 if dt else 13
    A(f"ds_read_b64_tr_b16 v[{r}:{r+1}], v{va}\nds_read_b64_tr_b16 v[{r+2}:{r+3}], v{va} offset:4096")
for k in range(8): A(f"v_sub_f32 v{S0+k}, v{S0+k}, v32")
for k in range(8): A(f"v_mul_f32 v{S0+k}, s43, v{S0+k}")
for k in range(8): A(f"v_exp_f32 v{S0+k}, v{S0+k}")
for k in range(4): A(f"v_cvt_pk_bf16_f32 v{36+k}, v{S0+2*k}, v{S0+2*k+1}")
A("s_waitcnt lgkmcnt(0)")
OD = 40
for dt in range(8):
    A(f"v_mfma_f32_16x16x32_bf16 v[{OD+4*dt}:{OD+4*dt+3}], v[{VR+4*dt}:{VR+4*dt+3}], v[36:39], 0")
for k in range(4): A(f"v_add_f32 v{S0+k}, v{S0+k}, v{S0+4+k}")
A("v_add_f32 v24, v24, v26\nv_add_f32 v25, v25, v27\nv_add_f32 v24, v24, v25")
swapadd(24, 25, 16); swapadd(24, 25, 32)
A("s_mov_b32 exec_lo, 0x00ff00ff\ns_mov_b32 exec_hi, 0x00ff00ff")
for dt in range(8): A(f"ds_write_b128 v8, v[{OD+4*dt}:{OD+4*dt+3}] offset:{64*dt}")
A(f"s_mov_b64 exec, 0xff\nds_write_b32 v9, v32 offset:{L_MX}\nds_write_b32 v9, v24 offset:{L_LX}")
lds_inc(L_CA2, wait=False)
stamp(4)
lds_wait(7, L_CA2, 4, 12, sleep=0)
A(f"ds_read_b128 v[24:27], v19 offset:{L_MX}\nds_read_b128 v[28:31], v19 offset:{L_LX}")
for w in range(4): A(f"ds_read_b128 v[{40+4*w}:{43+4*w}], v18 offset:{L_K+8192*w}")
A("s_waitcnt lgkmcnt(0)")
A("v_max3_f32 v32, v24, v25, v26\nv_max_f32 v32, v32, v27")
for w in range(4): A(f"v_sub_f32 v{24+w}, v{24+w}, v32")
for w in range(4): A(f"v_mul_f32 v{24+w}, s43, v{24+w}")
for w in range(4): A(f"v_exp_f32 v{24+w}, v{24+w}")
for k in range(4): A(f"v_mul_f32 v{36+k}, v24, v{40+k}")
A("v_mul_f32 v33, v24, v28")
for w in range(1, 4):
    for k in range(4): A(f"v_fmac_f32 v{36+k}, v{24+w}, v{40+4*w+k}")
    A(f"v_fmac_f32 v33, v{24+w}, v{28+w}")
A("v_mov_b32 v34, 0\nv_mov_b32 v35, 0")
tag_insert(36, 4); tag_insert(32, 4)
A("buffer_store_dwordx4 v[36:39], v20, s[36:39], s58 offen sc1")
A("s_mov_b32 exec_lo, 1\ns_mov_b32 exec_hi, 1")
A("buffer_store_dwordx4 v[32:35], v21, s[36:39], s59 offen sc1")
A("s_mov_b32 exec_lo, -1\ns_mov_b32 exec_hi, 0")
A("s_cmp_lg_u32 s44, 3\ns_cbranch_scc1 L_A_nohint")
A(f"buffer_store_byte v{VT}, v1, s[36:39], s47 offen sc1")
A("L_A_nohint:")
stamp(5)
if P["stamps"]:
    A("L_stamps:")
    A("s_mov_b64 exec, 1\ns_waitcnt lgkmcnt(0)")
    srd(36, 26, WS_USED)
    A(f"s_lshl_b32 s46, s2, 4\ns_add_u32 s46, s46, s3\ns_lshl_b32 s46, s46, 5\ns_add_u32 s46, s46, {STAMP}")
    for i in range(8): A(f"v_mov_b32 v{24+i}, s{80+2*i}")
    A("buffer_store_dwordx4 v[24:27], v7, s[36:39], s46 offen\nbuffer_store_dwordx4 v[28:31], v7, s[36:39], s46 offen offset:16")
A("L_end:\ns_endpgm")
A("L_code_end:")
if P["nopub"]: A.L = [l for l in A.L if not (l.startswith("buffer_store_") and l.endswith("sc1"))]
if P["nogather"]: A.L = [l for l in A.L if not (l.startswith("buffer_load_dwordx4") and l.endswith("sc1"))]
if P["nopoll"]: A.L = [l for l in A.L if not (l.startswith("s_load_dword") and l.endswith("glc"))]
A.L = hazard.fix(A.L)
A.footer(120, 96)
A.L.insert(A.L.index(".end_amdhsa_kernel"), "  .amdhsa_float_denorm_mode_32 3")
A.write(OUT)
```

```python
import sys
from asmlib import *
import hazard

P = dict(stamps=0, pol="nt", D=5, DY=6, DF=5, B0=8, eQ=0, eG=0, eA=0, DQ=0, DFY=0, DGY=0, freeA=0, freeB=0, GX=22, spin=400000, prefetch=1, hsleep=1, tfix=0, free=0,
         nopub=0, nogather=0, nopoll=0)
for a in sys.argv[2:]:
    k, v = a.split("=")
    assert k in P, k
    P[k] = v if k == "pol" else int(v)
OUT = sys.argv[1]
LSPIN = P["spin"] * 4
if P["free"]: P["spin"] = 1

EPA, ML, AP, GP, OP, HINT, QP, EPB, STAMP = 0x0, 0x1000, 0x15000, 0x95000, 0xB1000, 0x100000, 0x200000, 0x220000, 0x240000
WS_USED = 0x300000
L_FX, L_TAG, L_CQ, L_CG, L_CK, L_CV, L_CQR, L_CA2, L_CO, L_FH, L_CI, L_EQ, L_EG = 0, 4, 8, 12, 16, 32, 48, 52, 56, 60, 64, 68, 72
L_MX, L_LX = 0x100, 0x180
L_XN, L_OV = 0x400, 0xC00
L_REDQ, L_REDG, L_Q, L_K, L_V = 0xE00, 0x1600, 0x1E00, 0x3000, 0xB000
LDS_BYTES = 0x14400
DPPM = "row_mask:0xf bank_mask:0xf"
LOG2E = 0x3fb8aa3b
SCALE = 0x3db504f3

A = Asm()
A.header(256, 768, LDS_BYTES)
_uid = [0]
def lab(p):
    _uid[0] += 1
    return f"L_{p}_{_uid[0]}"
def stamp(i):
    if P["stamps"]: A(f"s_memrealtime s[{80+2*i}:{81+2*i}]")
def srd(d, base, size):
    A(f"s_mov_b32 s{d}, s{base}\ns_mov_b32 s{d+1}, s{base+1}\ns_mov_b32 s{d+2}, {size:#x}\ns_mov_b32 s{d+3}, 0x20000")
def lds_wait(vaddr, off, val, vt, sleep=1, extra=()):
    l = lab("lw"); e = lab("lwd")
    A(f"s_mov_b32 s60, {LSPIN}")
    A(f"{l}:\nds_read_b32 v{vt}, v{vaddr} offset:{off}")
    for x in extra: A(x)
    A(f"s_waitcnt lgkmcnt(0)\nv_readfirstlane_b32 s61, v{vt}")
    A(f"s_cmp_ge_u32 s61, {val}\ns_cbranch_scc1 {e}")
    if sleep: A(f"s_sleep {sleep}")
    A(f"s_sub_u32 s60, s60, 1\ns_cmp_lg_u32 s60, 0\ns_cbranch_scc1 {l}\n{e}:")
VT = 11
def hint_wait(loads, wide=None):
    l = lab("hw"); e = lab("hwd")
    A("s_and_b32 s56, s31, 0xff\ns_mul_i32 s56, s56, 0x01010101")
    A(f"s_mov_b32 s60, {P['spin']}")
    A(f"{l}:")
    regs = []
    if wide is not None:
        b, o = loads[-1]; loads = loads[:-1]
        A(f"s_load_dwordx2 s[68:69], s[{b}:{b+1}], {o} glc"); regs += [68, 69]
    for i, (b, o) in enumerate(loads):
        A(f"s_load_dword s{64+i}, s[{b}:{b+1}], {o} glc"); regs.append(64 + i)
    A("s_waitcnt lgkmcnt(0)")
    for i, r in enumerate(regs):
        A(f"s_xor_b32 s{r}, s{r}, s56")
        if i: A(f"s_or_b32 s{regs[0]}, s{regs[0]}, s{r}")
    A(f"s_cbranch_scc0 {e}")
    if P["hsleep"]: A(f"s_sleep {P['hsleep']}")
    A(f"s_sub_u32 s60, s60, 1\ns_cmp_lg_u32 s60, 0\ns_cbranch_scc1 {l}\n{e}:")
def tag_insert(vreg, n):
    for k in range(n): A(f"v_perm_b32 v{vreg+k}, v{vreg+k}, v{VT}, s{52+(k&3)}")
def tag_check(bases, vt0, vt1, vacc):
    first = True
    for b in bases:
        A(f"v_perm_b32 v{vt0}, v{b+1}, v{b}, s50\nv_perm_b32 v{vt1}, v{b+3}, v{b+2}, s51")
        if first:
            A(f"v_bitop3_b32 v{vacc}, v{vt0}, v{vt1}, v{VT} bitop3:0x56"); first = False
        else:
            A(f"v_bitop3_b32 v{vt0}, v{vt0}, v{vt1}, v{VT} bitop3:0x56\nv_or_b32 v{vacc}, v{vacc}, v{vt0}")
def gather_loop(loads, bases, vt0, vt1, vacc, sleep=0, issued=False):
    l = lab("gl"); e = lab("gld"); c = lab("glc")
    A(f"s_mov_b32 s60, {P['spin']}")
    if issued: A(f"s_branch {c}")
    A(f"{l}:")
    for x in loads: A(x)
    A(f"{c}:")
    A("s_waitcnt vmcnt(0)")
    tag_check(bases, vt0, vt1, vacc)
    A(f"v_cmp_ne_u32 vcc, 0, v{vacc}")
    A(f"s_and_b64 exec, exec, vcc\ns_cbranch_scc0 {e}")
    if sleep: A(f"s_sleep {sleep}")
    A(f"s_sub_u32 s60, s60, 1\ns_cmp_lg_u32 s60, 0\ns_cbranch_scc1 {l}\n{e}:")
    A("s_mov_b64 exec, -1")
def swapadd(v, t, which, op="v_add_f32"):
    A(f"v_mov_b32 v{t}, v{v}\nv_permlane{which}_swap_b32 v{t}, v{v}\n{op} v{v}, v{v}, v{t}")
def swapadd_n(v, t, n, which, op="v_add_f32"):
    for k in range(n): A(f"v_mov_b32 v{t+k}, v{v+k}")
    for k in range(n): A(f"v_permlane{which}_swap_b32 v{t+k}, v{v+k}")
    for k in range(n): A(f"{op} v{v+k}, v{v+k}, v{t+k}")
def allsum(v, t):
    for m in ("quad_perm:[1,0,3,2]", "quad_perm:[2,3,0,1]", "row_half_mirror", "row_mirror"):
        A(f"v_add_f32_dpp v{v}, v{v}, v{v} {m} {DPPM}")
    swapadd(v, t, 16); swapadd(v, t, 32)
def bf16r(v):
    A(f"v_cvt_pk_bf16_f32 v{v}, v{v}, v{v}\nv_lshlrev_b32 v{v}, 16, v{v}")
def lds_inc(off, wait=True, va=7):
    A("s_mov_b64 exec, 1" + ("\ns_waitcnt lgkmcnt(0)" if wait else "") + f"\nds_add_u32 v{va}, v15 offset:{off}\ns_mov_b64 exec, -1")
def finish():
    A("s_branch L_stamps" if P["stamps"] else "s_endpgm")
def common_regs():
    srd(36, 26, WS_USED)
    for k in range(4): A(f"s_mov_b32 s{52+k}, {0x07060500+k:#x}")
    A("s_mov_b32 s50, 0x0c0c0400\ns_mov_b32 s51, 0x04000c0c")
def get_tag():
    A(f"ds_read_b32 v{VT}, v7 offset:{L_TAG}\ns_waitcnt lgkmcnt(0)\nv_readfirstlane_b32 s31, v{VT}")
def gate():
    A("s_barrier"); get_tag()
def own_hint_base(extra=0):
    A(f"s_lshl_b32 s62, s2, 12\ns_add_u32 s62, s62, {HINT}")
    if extra is None: A("s_add_u32 s62, s62, s61")
    elif extra: A(f"s_add_u32 s62, s62, {extra}")
    A("s_add_u32 s62, s26, s62\ns_addc_u32 s63, s27, 0")
pol = P["pol"]
D = P["D"]; DF = P["DF"]
XPQ, XPG, SEL, OPB, ACC, QW, FW = 16, 20, 32, 40, 48, 52, 52
DY = P["DY"]; B0 = P["B0"]
def sync0():
    A("s_waitcnt lgkmcnt(0)\ns_barrier")
def build_op(dst, xp, t):
    for d in range(4):
        A(f"v_perm_b32 v{dst+d}, v{xp+(t>>1)}, v{xp+(t>>1)}, v{SEL+2*d+(t&1)}")
def mfma(op, w, first):
    A(f"v_mfma_f32_16x16x32_bf16 v[{ACC}:{ACC+3}], v[{op}:{op+3}], v[{w}:{w+3}], {'0' if first else f'v[{ACC}:{ACC+3}]'}")
def red_write(base, cnt):
    A("s_mov_b32 exec_lo, 0x00ff00ff\ns_mov_b32 exec_hi, 0xff00ff00")
    A(f"ds_write_b128 v1, v[{ACC}:{ACC+3}] offset:{base}")
    lds_inc(cnt, wait=False)

A("s_cmp_ge_u32 s2, 256\ns_cbranch_scc1 L_end")
A("s_load_dwordx16 s[4:19], s[0:1], 0\ns_load_dwordx8 s[20:27], s[0:1], 64")
A("v_lshrrev_b32 v1, 6, v0\nv_and_b32 v0, 63, v0\nv_readfirstlane_b32 s3, v1")
A("v_mov_b32 v7, 0\nv_mov_b32 v15, 1\ns_add_u32 s3, s3, 12\ns_and_b32 s3, s3, 15")
if P["stamps"]:
    for i in range(1, 8): A(f"s_mov_b32 s{80+2*i}, 0")
stamp(0)
if P["tfix"]: A("s_memrealtime s[94:95]")
A("s_and_b32 s28, s2, 7\ns_lshr_b32 s29, s2, 3\ns_lshr_b32 s30, s2, 4\ns_and_b32 s44, s3, 3")
A("v_lshrrev_b32 v2, 3, v0\nv_and_b32 v3, 7, v0\ns_mov_b32 s35, 0x20000\ns_mov_b32 s43, 0x20000")
A("s_cmp_lt_u32 s3, 4\ns_cbranch_scc1 L_S")
A("s_cmp_eq_u32 s3, 12\ns_cbranch_scc1 L_x")
A("s_cmp_lg_u32 s3, 13\ns_cbranch_scc1 L_other")
if P["prefetch"]:
    A("s_getpc_b64 s[40:41]\nL_pc:")
    A(f"s_mov_b32 s42, L_code_end-L_pc\nv_lshlrev_b32 v4, 7, v0\ns_movk_i32 s46, 0x2000")
    A("buffer_load_dword v40, v4, s[40:43], 0 offen\nbuffer_load_dword v40, v4, s[40:43], s46 offen")
A("s_branch L_other")
A("L_x:")
A("s_setprio 3")
A("v_lshlrev_b32 v5, 5, v0\ns_movk_i32 s42, 2048")
A("s_waitcnt lgkmcnt(0)\ns_mov_b32 s40, s4\ns_mov_b32 s41, s5")
A("buffer_load_dwordx4 v[16:19], v5, s[40:43], 0 offen\nbuffer_load_dwordx4 v[20:23], v5, s[40:43], 0 offen offset:16")
A("s_branch L_ln")
A("L_S:")
A("s_setprio 3")
A("s_and_b32 s45, s29, 3\ns_lshl_b32 s48, s45, 2\ns_add_u32 s48, s48, s44\ns_lshr_b32 s47, s29, 2")
A("s_lshr_b32 s46, s29, 4\ns_lshl_b32 s46, s46, 2\ns_add_u32 s45, s45, s46\ns_lshl_b32 s45, s45, 1\ns_and_b32 s46, s44, 1\ns_add_u32 s45, s45, s46")
A("s_lshl_b32 s46, s44, 1\ns_or_b32 s46, s46, 3\ns_and_b32 s49, s47, 3\ns_cmp_eq_u32 s49, 3\ns_cselect_b32 s48, s45, s48\ns_cselect_b32 s47, s46, s47")
A("s_lshl_b32 s48, s48, 6\ns_lshl_b32 s46, s28, 3\ns_add_u32 s47, s47, s46\ns_lshl_b32 s47, s47, 7")
A(f"s_lshl_b32 s46, s48, 13\ns_add_u32 s60, s47, s46\ns_mov_b32 s38, {8<<20:#x}\ns_mov_b32 s39, 0x20000")
A("v_lshlrev_b32 v4, 16, v2\nv_lshl_add_u32 v4, v3, 4, v4")
A("s_waitcnt lgkmcnt(0)")
A("s_mov_b32 s36, s10\ns_mov_b32 s37, s11")
def q_issue(t):
    def f():
        A(f"buffer_load_dwordx4 v[{QW+4*t}:{QW+4*t+3}], v4, s[36:39], s60 offen {pol}")
        if t < 7: A("s_add_u32 s60, s60, 0x2000")
    return f
assert B0 <= 8
for t in range(B0): q_issue(t)()
stamp(1)
A("s_lshr_b32 s46, s30, 1\ns_add_u32 s47, s46, 1\ns_cmp_eq_u32 s47, 7\ns_cselect_b32 s47, 0, s47")
A("s_cmp_ge_u32 s44, 2\ns_cselect_b32 s46, s47, s46\ns_cselect_b32 s32, s18, s16\ns_cselect_b32 s33, s19, s17")
A("s_mul_i32 s47, s28, 7\ns_add_u32 s46, s46, s47\ns_lshl_b32 s49, s46, 7")
A(f"s_cmp_ge_u32 s30, 14\ns_cselect_b32 s34, 0, {7<<20:#x}")
GX = P["GX"]; GY = 32 - GX
assert GX % 2 == 0 and GX <= 24
A("s_and_b32 s45, s30, 1\ns_lshl_b32 s45, s45, 1\ns_and_b32 s46, s44, 1\ns_add_u32 s45, s45, s46")
A("s_lshl_b32 s56, s28, 2\ns_lshr_b32 s46, s30, 2\ns_add_u32 s56, s56, s46")
A("s_and_b32 s46, s30, 3\ns_lshl_b32 s57, s46, 9\ns_lshl_b32 s46, s44, 7\ns_add_u32 s57, s57, s46")
A("s_bitcmp1_b32 s29, 0\ns_cbranch_scc1 L_SY")

def post_burst(ng, D):
    A("v_and_b32 v16, 1, v3\nv_cmp_eq_u32 vcc, 1, v16")
    A("v_mov_b32 v16, 0x0c0c0100\nv_mov_b32 v17, 0x01000c0c\nv_cndmask_b32 v16, v16, v17, vcc")
    A("v_mov_b32 v17, 0x0c0c0302\nv_mov_b32 v18, 0x03020c0c\nv_cndmask_b32 v17, v17, v18, vcc")
    A("v_lshrrev_b32 v18, 1, v3\nv_mov_b32 v19, 0x0c0c0c0c")
    for d in range(4):
        A(f"v_cmp_eq_u32 vcc, {d}, v18")
        A(f"v_cndmask_b32 v{SEL+2*d}, v19, v16, vcc\nv_cndmask_b32 v{SEL+2*d+1}, v19, v17, vcc")
    A("v_bfe_u32 v16, v0, 4, 1\nv_lshl_add_u32 v16, v3, 1, v16\nv_lshrrev_b32 v1, 5, v0\nv_lshlrev_b32 v1, 8, v1\nv_lshl_add_u32 v1, v16, 4, v1")
    A("s_lshl_b32 s46, s44, 9\nv_add_u32 v1, s46, v1")
    A(f"s_lshl_b32 s48, s48, 1\ns_lshl_b32 s59, s59, 1\ns_add_u32 s59, s59, {L_XN}\nv_lshlrev_b32 v{OPB}, 4, v2\nv_mul_u32_u24 v{OPB+1}, {2*ng}, v2\nv_add_u32 v{OPB+1}, s59, v{OPB+1}\nv_add_u32 v{OPB}, s48, v{OPB}")
    A(f"v_mul_u32_u24 v5, {ng*7168}, v2\nv_lshl_add_u32 v5, v3, 4, v5")
    A("s_barrier")
    stamp(2)
    A(f"ds_read_b128 v[{XPQ}:{XPQ+3}], v{OPB} offset:{L_XN}")
    for g in range(0, ng // 2, 2): A(f"ds_read2_b32 v[{XPG+g}:{XPG+g+1}], v{OPB+1} offset0:{g} offset1:{g+1}")
    A("s_waitcnt lgkmcnt(0)")

def run_stream(seq, pre):
    n = len(seq); nextp = 0
    for k in range(pre, n):
        dd = seq[k][2]
        while nextp < k - dd:
            if seq[nextp][1]:
                A(f"s_waitcnt vmcnt({k-1-nextp})"); seq[nextp][1]()
            nextp += 1
        A(f"s_waitcnt vmcnt({dd-1})")
        seq[k][0]()
        while nextp <= k - dd:
            if seq[nextp][1]: seq[nextp][1]()
            nextp += 1
    while nextp < n:
        if seq[nextp][1]:
            A(f"s_waitcnt vmcnt({n-1-nextp})"); seq[nextp][1]()
        nextp += 1
def q_proc(t):
    def f():
        build_op(OPB + 4 * (t & 1), XPQ, t)
        mfma(OPB + 4 * (t & 1), QW + 4 * t, t == 0)
        if P["eQ"] and t == 7 - P["eQ"]: lds_inc(L_EQ, wait=False)
        if t == 7:
            red_write(L_REDQ, L_CQ); stamp(3)
    return f
def qseq(d): return [[q_issue(t), q_proc(t), P["DQ"] or d] for t in range(8)]

A(f"s_mul_i32 s59, s45, {8*GX}\ns_mul_i32 s47, s59, 7168\ns_add_u32 s47, s47, s49")
def gslot(g): return FW + 4 * (8 + g % 8)
def g_issue(g, n, slot):
    def f():
        A(f"buffer_load_dwordx4 v[{slot}:{slot+3}], v5, s[32:35], s47 offen {pol}")
        if g < n - 1: A("s_add_u32 s47, s47, 7168")
    return f
def g_proc(g, n, slot, first_extra=None):
    def f():
        if first_extra: first_extra()
        build_op(OPB + 4 * (g & 1), XPG, g)
        mfma(OPB + 4 * (g & 1), slot, g == 0)
        if P["eG"] and g == n - 1 - P["eG"]: lds_inc(L_EG, wait=False)
        if g == n - 1: g_done()
    return f
def f_issue(t, last):
    def f():
        A(f"buffer_load_dwordx4 v[{FW+4*t}:{FW+4*t+3}], v6, s[40:43], s58 offen offset:{2048*(t&1)} {pol}")
        if t & 1 and t < last: A("s_add_u32 s58, s58, 4096")
    return f
def g_done():
    red_write(L_REDG, L_CG); stamp(4)
def q_done():
    red_write(L_REDQ, L_CQ)
seq = [[g_issue(g, GX, gslot(g)), g_proc(g, GX, gslot(g)), D] for g in range(GX)]
seq += [[f_issue(t, 15), None, DF] for t in range(16)]
for t in range(D): seq[GX+t][2] = D
seq = qseq(D) + seq
A(f"s_mov_b32 s40, s12\ns_mov_b32 s41, s13\ns_mov_b32 s42, {8<<20:#x}\ns_lshl_b32 s58, s56, 18\ns_add_u32 s58, s58, s57")
A("v_lshlrev_b32 v6, 15, v2\nv_lshl_add_u32 v6, v3, 4, v6")
post_burst(GX, D)
run_stream(seq, B0)
A(f"s_mov_b32 s45, {L_CO}\ns_mov_b32 s46, {0 if P['freeA'] else 4}\ns_mov_b32 s49, 0")
A("s_branch L_F")
A("L_SY:")
A("s_lshr_b32 s47, s28, 1\ns_lshl_b32 s47, s47, 23\ns_and_b32 s46, s28, 1\ns_lshl_b32 s46, s46, 4\ns_add_u32 s46, s46, s30\ns_lshl_b32 s46, s46, 15\ns_add_u32 s47, s47, s46")
A(f"s_lshl_b32 s46, s44, 13\ns_add_u32 s58, s47, s46\ns_add_u32 s58, s58, {28672*256}\ns_add_u32 s61, s46, {L_K}")
A("v_lshrrev_b32 v16, 4, v0\nv_and_b32 v17, 15, v0")
A("v_xor_b32 v8, v17, v16\nv_lshlrev_b32 v8, 4, v8\nv_lshl_add_u32 v8, v16, 8, v8")
A("v_xor_b32 v9, 64, v8\nv_xor_b32 v10, 128, v8\nv_xor_b32 v14, 192, v8")
A("v_lshlrev_b32 v12, 1, v16\nv_xor_b32 v12, v17, v12\nv_lshlrev_b32 v12, 4, v12\nv_lshl_add_u32 v12, v16, 8, v12\nv_xor_b32 v13, 128, v12")
A(f"s_mov_b32 s40, s6\ns_mov_b32 s41, s7\ns_mov_b32 s42, {32<<20:#x}")
A(f"s_mul_i32 s59, s45, {8*GY}\ns_add_u32 s59, s59, {32*GX}\ns_mul_i32 s47, s59, 7168\ns_add_u32 s47, s47, s49")
A("s_lshl_b32 s46, s44, 2\nv_mov_b32 v11, s46")
def kv_issue(i):
    def f():
        mat, ii = i // 8, i % 8
        if i == 8: A("s_mov_b32 s40, s8\ns_mov_b32 s41, s9\ns_sub_u32 s58, s58, 8192")
        if ii % 4 == 0:
            A(f"s_add_u32 m0, s61, {(L_V - L_K) * mat + 4096 * (ii // 4)}")
            if i: A("s_add_u32 s58, s58, 4096")
        va = (8, 9, 10, 14)[ii & 3] if mat == 0 else (12 + (ii & 1))
        A(f"buffer_load_dwordx4 v{va}, s[40:43], s58 offen offset:{1024*(ii&3)} {pol} lds")
        if i == 15:
            A(f"s_mov_b32 s40, s20\ns_mov_b32 s41, s21\ns_mov_b32 s42, {7<<20:#x}\ns_mul_i32 s58, s56, {112*2048}\ns_add_u32 s58, s58, s57")
    return f
seq = [[kv_issue(i), None, DY] for i in range(16)]
seq[7][1] = lambda: lds_inc(L_CK, wait=False, va=11)
def v_done():
    lds_inc(L_CV, wait=False, va=11); stamp(5)
seq[15][1] = v_done
DGY = P["DGY"] or D
seq += [[g_issue(g, GY, gslot(g)), g_proc(g, GY, gslot(g)), DGY] for g in range(GY)]
DFY = P["DFY"] or DF
seq += [[f_issue(t, 15), None, DFY] for t in range(2, 16)]
for t in range(DGY): seq[16+GY+t][2] = DGY
assert DGY <= 6
seq = qseq(DY) + seq
A(f"v_mul_u32_u24 v6, {14*2048}, v2\nv_lshl_add_u32 v6, v3, 4, v6")
post_burst(GY, DY)
run_stream(seq, B0)
A(f"s_mov_b32 s45, {L_FH}\ns_mov_b32 s46, {0 if P['freeB'] else 1}\ns_mov_b32 s49, 4096")
A("L_F:")
stamp(5) if False else None
A(f"s_lshl_b32 s58, s57, 7\ns_lshl_b32 s48, s56, 7\ns_add_u32 s58, s58, s48\ns_add_u32 s58, s58, s49\ns_add_u32 s58, s58, {OP}")
common_regs(); get_tag()
A("v_mov_b32 v6, s45\nv_lshlrev_b32 v5, 5, v2")
A("v_bfe_u32 v10, v0, 4, 1\nv_lshl_add_u32 v12, v3, 1, v10\nv_and_b32 v13, 7, v12\nv_lshlrev_b32 v13, 4, v13\nv_lshrrev_b32 v12, 3, v12\nv_lshl_add_u32 v13, v12, 13, v13")
for k in range(4): A(f"v_mov_b32 v{ACC+k}, 0")
stamp(6)
lds_wait(6, 0, "s46", 10, sleep=0, extra=[f"ds_read_b128 v[16:19], v5 offset:{L_OV}", f"ds_read_b128 v[20:23], v5 offset:{L_OV+16}"])
A("s_cmp_lg_u32 s49, 0\ns_cbranch_scc1 L_mm2")
for t in range(16):
    if t == 2: A("L_mm2:")
    if t % 2 == 0:
        build_op(OPB, 16, t); build_op(OPB + 4, 16, t + 1)
    if 15 - t < max(DF, DFY): A(f"s_waitcnt vmcnt({15-t})")
    mfma(OPB + 4 * (t & 1), FW + 4 * t, False)
for k in range(4): A(f"v_mov_b32 v{24+k}, v{ACC+k}")
for k in range(4): A(f"v_permlane32_swap_b32 v{24+k}, v{ACC+k}")
for k in range(4): A(f"v_add_f32_dpp v{24+k}, v{ACC+k}, v{24+k} row_ror:8 {DPPM}")
tag_insert(24, 4)
A("s_mov_b64 exec, 0x00ff00ff")
A("buffer_store_dwordx4 v[24:27], v13, s[36:39], s58 offen sc1")
lds_inc(L_CI, wait=False)
stamp(7)
finish()
A("L_ln:")
A("s_setprio 3")
A(f"s_add_u32 s62, s26, {EPB}\ns_addc_u32 s63, s27, 0")
A(f"s_load_dword s31, s[26:27], {EPA}\ns_load_dword s57, s[62:63], 0")
A("s_waitcnt vmcnt(0)")
stamp(1)
for k in range(8): A(f"v_lshlrev_b32 v{24+2*k}, 16, v{16+k}\nv_and_b32 v{25+2*k}, 0xffff0000, v{16+k}")
for k in range(8): A(f"v_add_f32 v{40+k}, v{24+2*k}, v{25+2*k}")
for k in range(4): A(f"v_add_f32 v{40+k}, v{40+k}, v{44+k}")
A("v_add_f32 v40, v40, v42\nv_add_f32 v41, v41, v43\nv_add_f32 v6, v40, v41")
allsum(6, 13)
A("v_mul_f32 v6, 0x3a800000, v6")
for k in range(16): A(f"v_sub_f32 v{40+k}, v{24+k}, v6")
A("v_mul_f32 v10, v40, v40\nv_mul_f32 v12, v41, v41")
for k in range(2, 16): A(f"v_fmac_f32 v{10+2*(k&1)}, v{40+k}, v{40+k}")
A("v_add_f32 v10, v10, v12")
allsum(10, 13)
A("v_mul_f32 v10, 0x3a800000, v10")
bf16r(6); bf16r(10)
A("v_add_f32 v10, 0x3727c5ac, v10")
bf16r(10)
A("v_sqrt_f32 v10, v10")
for k in range(16): A(f"v_sub_f32 v{24+k}, v{24+k}, v6")
bf16r(10)
A("v_rcp_f32 v10, v10")
for k in range(8): A(f"v_cvt_pk_bf16_f32 v{16+k}, v{24+2*k}, v{25+2*k}")
for k in range(8):
    a, b = 24 + 2 * k, 25 + 2 * k
    A(f"v_lshlrev_b32 v{a}, 16, v{16+k}\nv_and_b32 v{b}, 0xffff0000, v{16+k}")
    A(f"v_mul_f32 v{a}, v{a}, v10\nv_mul_f32 v{b}, v{b}, v10")
    A(f"v_cvt_pk_bf16_f32 v{16+k}, v{a}, v{b}")
A(f"ds_write_b128 v5, v[16:19] offset:{L_XN}\nds_write_b128 v5, v[20:23] offset:{L_XN+16}")
A("s_waitcnt lgkmcnt(0)")
A("s_mul_i32 s31, s31, 0x9E3779B5\ns_mul_i32 s57, s57, 0x85EBCA6C\ns_add_u32 s31, s31, s57\ns_add_u32 s31, s31, 0x6A09E667")
A(f"v_mov_b32 v{VT}, s31\nds_write_b32 v7, v{VT} offset:{L_TAG}")
stamp(2)
A("s_waitcnt lgkmcnt(0)\ns_barrier")
common_regs()
A("s_branch L_H3")
A("L_other:")
A("s_setprio 2")
A("v_lshlrev_b32 v4, 2, v0\ns_mov_b64 exec, 0x7ffffffc\nds_write_b32 v4, v7\ns_mov_b64 exec, -1")
A("s_waitcnt lgkmcnt(0)")
common_regs()
A("v_and_b32 v12, 15, v0\nv_lshlrev_b32 v12, 4, v12\nv_lshrrev_b32 v10, 4, v0\nv_lshl_add_u32 v14, v10, 9, v12")
A("s_cmp_lt_u32 s3, 8\ns_cbranch_scc1 L_gath")
A("s_cmp_eq_u32 s3, 14\ns_cbranch_scc1 L_Gred")
A("s_cmp_eq_u32 s3, 15\ns_cbranch_scc1 L_HG")
A("s_lshr_b32 s47, s29, 2\ns_and_b32 s45, s29, 3\ns_lshr_b32 s46, s29, 4\ns_lshl_b32 s46, s46, 2\ns_add_u32 s46, s46, s45")
A("s_and_b32 s49, s47, 3\ns_cmp_eq_u32 s49, 3\ns_cselect_b32 s45, s46, s45\ns_cselect_b32 s47, 3, s47\ns_cselect_b32 s41, -1, 0\ns_cselect_b32 s40, 0xffff, 0")
A("s_lshl_b32 s46, s28, 3\ns_add_u32 s47, s47, s46")
A(f"s_lshl_b32 s58, s47, 11\ns_lshl_b32 s46, s45, 8\ns_add_u32 s58, s58, s46\ns_add_u32 s58, s58, {QP}")
A("v_lshrrev_b32 v5, 5, v0\nv_lshl_add_u32 v12, v5, 13, v12")
A("v_and_b32 v1, 15, v0\nv_lshlrev_b32 v1, 16, v1\nv_lshl_add_u32 v1, v5, 9, v1\nv_bfe_u32 v5, v0, 4, 1\nv_lshl_add_u32 v1, v5, 12, v1")
A(f"s_andn2_b32 s59, s28, 1\ns_lshl_b32 s59, s59, 12\ns_and_b32 s46, s47, 15\ns_lshl_b32 s46, s46, 7\ns_add_u32 s59, s59, s46\ns_add_u32 s59, s59, s45\ns_add_u32 s59, s59, {HINT+8*4096}")
gate()
lds_wait(7, L_CQ, 4, 13, sleep=0, extra=[f"ds_read_b128 v[24:27], v14 offset:{L_REDQ}", f"ds_read_b128 v[28:31], v14 offset:{L_REDQ+256}"])
for k in range(4): A(f"v_add_f32 v{24+k}, v{24+k}, v{28+k}")
swapadd_n(24, 28, 4, 16)
A("s_cmp_eq_u32 s49, 3\ns_cbranch_scc1 L_qsp")
swapadd_n(24, 28, 4, 32)
A("L_qsp:")
tag_insert(24, 4)
A("s_mov_b32 exec_lo, 0xffff\ns_mov_b32 exec_hi, s40")
A("buffer_store_dwordx4 v[24:27], v12, s[36:39], s58 offen sc1")
A("s_mov_b32 exec_lo, -1\ns_mov_b32 exec_hi, s41")
A(f"buffer_store_byte v{VT}, v1, s[36:39], s59 offen sc1")
stamp(3)
finish()
A("L_gath:")
A("s_bitcmp1_b32 s29, 0\ns_cbranch_scc0 L_H2")
A("s_branch L_A2")
A("L_HG:")
A("s_bitcmp1_b32 s29, 0\ns_cbranch_scc0 L_idle")
A("s_lshr_b32 s45, s30, 2\ns_mul_i32 s46, s45, 112")
A("v_lshrrev_b32 v8, 1, v0\nv_min_u32 v8, 27, v8\nv_lshl_add_u32 v8, v8, 2, s46")
A("v_lshrrev_b32 v9, 6, v8\nv_and_b32 v8, 63, v8\nv_lshlrev_b32 v8, 2, v8\nv_lshl_add_u32 v8, v9, 11, v8\nv_and_b32 v9, 1, v0\nv_lshl_add_u32 v8, v9, 8, v8")
A(f"s_mul_i32 s58, s28, {7*2048}\ns_add_u32 s58, s58, {GP}")
A("v_mul_u32_u24 v10, 37, v0\nv_lshrrev_b32 v10, 8, v10\nv_add_u32 v10, v10, v0\nv_lshlrev_b32 v10, 2, v10")
A("s_lshl_b32 s61, s45, 1\ns_sub_u32 s61, s61, 1\ns_max_i32 s61, s61, 0\ns_min_u32 s61, s61, 4\ns_lshl_b32 s61, s61, 7\ns_add_u32 s61, s61, 2048")
own_hint_base(None)
gate()
lds_wait(7, L_EG if P["eG"] else L_CG, 4, 13, sleep=2)
hint_wait([(62, 128 * i) for i in range(4)])
stamp(6)
gather_loop([f"buffer_load_dwordx4 v[{24+4*k}:{27+4*k}], v8, s[36:39], s58 offen offset:{(0,1024,512,1536)[k]} sc1" for k in range(4)], [24, 28, 32, 36], 4, 5, 6)
for k in range(8): A(f"v_add_f32 v{24+k}, v{24+k}, v{32+k}")
for k in range(8): A(f"v_add_f32_dpp v{24+k}, v{24+k}, v{24+k} quad_perm:[1,0,3,2] {DPPM}")
A("v_cmp_eq_u32 vcc, 1, v9")
A("v_cndmask_b32 v24, v24, v26, vcc\nv_cndmask_b32 v25, v25, v27, vcc\nv_cndmask_b32 v28, v28, v30, vcc\nv_cndmask_b32 v29, v29, v31, vcc")
A("v_cvt_pk_bf16_f32 v25, v24, v25\nv_cvt_pk_bf16_f32 v29, v28, v29")
A("v_lshlrev_b32 v24, 16, v25\nv_and_b32 v25, 0xffff0000, v25\nv_lshlrev_b32 v28, 16, v29\nv_and_b32 v29, 0xffff0000, v29")
A(f"v_mul_f32 v26, {(LOG2E ^ 0x80000000):#x}, v24\nv_mul_f32 v27, {(LOG2E ^ 0x80000000):#x}, v25\nv_exp_f32 v26, v26\nv_exp_f32 v27, v27")
A("v_add_f32 v26, 1.0, v26\nv_add_f32 v27, 1.0, v27\nv_rcp_f32 v26, v26\nv_rcp_f32 v27, v27\nv_mul_f32 v24, v24, v26\nv_mul_f32 v25, v25, v27")
A("v_cvt_pk_bf16_f32 v25, v24, v25\nv_lshlrev_b32 v24, 16, v25\nv_and_b32 v25, 0xffff0000, v25")
A("v_mul_f32 v24, v24, v28\nv_mul_f32 v25, v25, v29\nv_cvt_pk_bf16_f32 v24, v24, v25")
A("s_mov_b32 exec_hi, 0x00ffffff")
A(f"ds_write_b32 v10, v24 offset:{L_OV+4}")
lds_inc(L_FH, wait=False)
stamp(7)
A("L_fin4:")
finish()
A("L_Gred:")
A("s_cmp_ge_u32 s30, 14\ns_cbranch_scc1 L_idle")
A("s_lshr_b32 s45, s30, 1\ns_add_u32 s46, s45, 1\ns_cmp_eq_u32 s46, 7\ns_cselect_b32 s46, 0, s46")
A("s_lshl_b32 s47, s45, 11\ns_lshl_b32 s46, s46, 11\ns_add_u32 s46, s46, 1024")
A("v_mov_b32 v13, s47\nv_mov_b32 v5, s46\nv_cmp_le_u32 vcc, 32, v0\nv_cndmask_b32 v13, v13, v5, vcc\nv_add_u32 v13, v13, v12")
A("s_and_b32 s46, s29, 1\ns_lshl_b32 s46, s46, 1\ns_and_b32 s47, s30, 1\ns_add_u32 s46, s46, s47")
A(f"s_mul_i32 s58, s28, {7*2048}\ns_lshl_b32 s47, s46, 8\ns_add_u32 s58, s58, s47\ns_add_u32 s58, s58, {GP}")
A("v_and_b32 v1, 15, v0\nv_lshlrev_b32 v1, 16, v1\nv_bfe_u32 v5, v0, 4, 1\nv_mul_u32_u24 v5, 896, v5\nv_sub_u32 v1, v1, v5\nv_add_u32 v1, 896, v1")
A(f"s_lshl_b32 s59, s28, 12\ns_lshl_b32 s47, s45, 7\ns_add_u32 s59, s59, s47\ns_add_u32 s59, s59, s46\ns_add_u32 s59, s59, {HINT+8*4096+2048+128-896}")
A("s_cmp_eq_u32 s45, 6\ns_cselect_b32 s40, -1, 0xffff")
gate()
if P["eG"]:
    lds_wait(7, L_EG, 4, 5, sleep=1)
    A("s_mov_b32 exec_lo, s40\ns_mov_b32 exec_hi, 0")
    A(f"buffer_store_byte v{VT}, v1, s[36:39], s59 offen sc1")
    A("s_mov_b64 exec, -1")
lds_wait(7, L_CG, 1, 5, sleep=2)
lds_wait(7, L_CG, 4, 5, sleep=0, extra=[f"ds_read_b128 v[24:27], v14 offset:{L_REDG}", f"ds_read_b128 v[28:31], v14 offset:{L_REDG+256}"])
for k in range(4): A(f"v_add_f32 v{24+k}, v{24+k}, v{28+k}")
swapadd_n(24, 28, 4, 16)
tag_insert(24, 4)
A("s_mov_b32 exec_lo, 0xffff\ns_mov_b32 exec_hi, 0xffff")
A("buffer_store_dwordx4 v[24:27], v13, s[36:39], s58 offen sc1")
if not P["eG"]:
    A("s_mov_b32 exec_lo, s40\ns_mov_b32 exec_hi, 0")
    A(f"buffer_store_byte v{VT}, v1, s[36:39], s59 offen sc1")
stamp(6)
A("L_fin5:")
finish()
A("L_H2:")
A("s_lshl_b32 s45, s28, 2\ns_lshr_b32 s46, s30, 2\ns_add_u32 s45, s45, s46")
A(f"s_lshl_b32 s58, s45, 14\ns_lshl_b32 s46, s44, 7\ns_add_u32 s58, s58, s46\ns_add_u32 s58, s58, {AP}")
A("s_add_u32 s40, s58, 4096\ns_add_u32 s41, s58, 8192\ns_add_u32 s42, s58, 12288")
A(f"s_lshl_b32 s47, s45, 9\ns_add_u32 s47, s47, {ML}")
A("v_lshlrev_b32 v8, 9, v2\nv_lshl_add_u32 v8, v3, 4, v8\nv_lshlrev_b32 v9, 4, v2")
A("s_lshl_b32 s46, s44, 6\nv_lshlrev_b32 v10, 3, v3\nv_add_u32 v10, s46, v10")
A("s_lshl_b32 s61, s44, 8")
own_hint_base(None)
gate()
hint_wait([(62, 0), (62, 128)])
lds_inc(L_CQR, wait=False)
lds_wait(7, L_CQR, 4, 12, sleep=1)
stamp(4)
gather_loop([f"buffer_load_dwordx4 v[{24+4*k}:{27+4*k}], v9, s[36:39], s47 offen offset:{128*k} sc1" for k in range(4)] +
            [f"buffer_load_dwordx4 v[{40+4*k}:{43+4*k}], v8, s[36:39], s{(58,40,41,42)[k]} offen sc1" for k in range(4)],
            [24, 28, 32, 36, 40, 44, 48, 52], 12, 13, 14)
for k in range(4): A(f"v_and_b32 v{24+4*k}, 0xffffff00, v{24+4*k}")
A("v_max3_f32 v12, v24, v28, v32\nv_max_f32 v12, v12, v36")
A(f"v_max_f32_dpp v12, v12, v12 row_ror:8 {DPPM}")
swapadd(12, 13, 16, "v_max_f32"); swapadd(12, 13, 32, "v_max_f32")
A(f"s_mov_b32 s61, {LOG2E:#x}")
for k in range(4): A(f"v_sub_f32 v{24+4*k}, v{24+4*k}, v12")
for k in range(4): A(f"v_mul_f32 v{24+4*k}, s61, v{24+4*k}")
for k in range(4): A(f"v_exp_f32 v{24+4*k}, v{24+4*k}")
A("v_mul_f32 v56, v24, v25")
for e in range(4): A(f"v_mul_f32 v{57+e}, v24, v{40+e}")
for k in range(1, 4):
    A(f"v_fmac_f32 v56, v{24+4*k}, v{25+4*k}")
    for e in range(4): A(f"v_fmac_f32 v{57+e}, v{24+4*k}, v{40+4*k+e}")
for k in range(5): A(f"v_add_f32_dpp v{56+k}, v{56+k}, v{56+k} row_ror:8 {DPPM}")
swapadd_n(56, 62, 5, 16); swapadd_n(56, 62, 5, 32)
A("v_rcp_f32 v56, v56")
for e in range(4): A(f"v_mul_f32 v{57+e}, v{57+e}, v56")
A("v_cvt_pk_bf16_f32 v62, v57, v58\nv_cvt_pk_bf16_f32 v63, v59, v60")
A(f"s_mov_b64 exec, 0xff\nds_write_b64 v10, v[62:63] offset:{L_OV}")
lds_inc(L_CO, wait=False)
stamp(5)
finish()
A("L_H3:")
A("s_cmp_lt_u32 s29, 28\ns_cbranch_scc1 L_noep")
A("s_lshl_b32 s45, s28, 2\ns_add_u32 s45, s45, s29\ns_sub_u32 s45, s45, 28")
srd(40, 4, 2048)
A("s_lshl_b32 s46, s45, 6\nv_lshlrev_b32 v4, 3, v3\nbuffer_load_dwordx2 v[8:9], v4, s[40:43], s46 offen")
A(f"s_lshl_b32 s59, s45, 13\ns_add_u32 s59, s59, {OP}\ns_add_u32 s58, s59, 4096\nv_lshlrev_b32 v14, 4, v0")
A("s_waitcnt vmcnt(0)")
srd(40, 22, 2048)
A("v_lshlrev_b32 v16, 16, v8\nv_and_b32 v17, 0xffff0000, v8\nv_lshlrev_b32 v18, 16, v9\nv_and_b32 v19, 0xffff0000, v9")
lds_wait(7, L_CI, 4, 5, sleep=1)
gather_loop([f"buffer_load_dwordx4 v[{24+4*k}:{27+4*k}], v14, s[36:39], s{59-k//4} offen offset:{1024*(k%4)} sc1" for k in range(8)], [24+4*k for k in range(8)], 5, 6, 10)
stamp(6)
for h in (0, 16):
    for k in range(4): A(f"v_add_f32 v{24+h+k}, v{24+h+k}, v{28+h+k}\nv_add_f32 v{32+h+k}, v{32+h+k}, v{36+h+k}")
for k in range(4): A(f"v_add_f32 v{24+k}, v{24+k}, v{32+k}\nv_add_f32 v{28+k}, v{40+k}, v{48+k}")
for k in range(4): A(f"v_permlane32_swap_b32 v{24+k}, v{28+k}")
for k in range(4): A(f"v_add_f32 v{28+k}, v{24+k}, v{28+k}")
for k in range(4): A(f"v_add_f32_dpp v{28+k}, v{28+k}, v{28+k} row_ror:8 {DPPM}")
swapadd_n(28, 32, 4, 16)
A("v_cvt_pk_bf16_f32 v28, v28, v29\nv_cvt_pk_bf16_f32 v29, v30, v31\nv_mov_b32 v30, v28\nv_mov_b32 v31, v29")
A("v_permlane32_swap_b32 v28, v30\nv_permlane32_swap_b32 v29, v31")
A("v_lshlrev_b32 v32, 16, v28\nv_and_b32 v33, 0xffff0000, v28\nv_lshlrev_b32 v34, 16, v29\nv_and_b32 v35, 0xffff0000, v29")
for k in range(4): A(f"v_add_f32 v{32+k}, v{32+k}, v{16+k}")
A("v_cvt_pk_bf16_f32 v28, v32, v33\nv_cvt_pk_bf16_f32 v29, v34, v35")
A("v_lshlrev_b32 v32, 16, v28\nv_and_b32 v33, 0xffff0000, v28\nv_lshlrev_b32 v34, 16, v29\nv_and_b32 v35, 0xffff0000, v29")
A("v_lshlrev_b32 v36, 16, v30\nv_and_b32 v37, 0xffff0000, v30\nv_lshlrev_b32 v38, 16, v31\nv_and_b32 v39, 0xffff0000, v31")
for k in range(4): A(f"v_add_f32 v{32+k}, v{32+k}, v{36+k}")
A("v_cvt_pk_bf16_f32 v28, v32, v33\nv_cvt_pk_bf16_f32 v29, v34, v35")
A("s_mov_b64 exec, 0xff\nbuffer_store_dwordx2 v[28:29], v4, s[40:43], s46 offen")
stamp(7)
A("s_mov_b64 exec, 1")
A("s_cmp_lg_u32 s45, 0\ns_cbranch_scc1 L_noep")
A(f"s_mov_b32 s46, {EPB}\nbuffer_store_dword v{VT}, v7, s[36:39], 0 offen offset:{EPA}\nbuffer_store_dword v{VT}, v7, s[36:39], s46 offen")
if P["tfix"]:
    A(f"L_tf:\ns_memrealtime s[92:93]\ns_waitcnt lgkmcnt(0)\ns_sub_u32 s46, s92, s94\ns_cmp_lt_u32 s46, {P['tfix']}\ns_cbranch_scc1 L_tf")
A("L_noep:")
finish()
A("L_idle:")
A("s_barrier\ns_endpgm")
KR, VR, QF, S0 = 40, 72, 104, 24
A("L_A2:")
A("s_lshr_b32 s45, s28, 1\ns_and_b32 s46, s28, 1\ns_lshl_b32 s46, s46, 4\ns_add_u32 s46, s46, s30")
A(f"s_lshl_b32 s49, s44, 13\ns_add_u32 s49, s49, {L_K}")
A("v_lshrrev_b32 v4, 4, v0\nv_and_b32 v5, 15, v0\nv_xor_b32 v6, v5, v4\nv_lshlrev_b32 v6, 4, v6")
A("v_lshl_add_u32 v8, v5, 8, v6\nv_add_u32 v8, s49, v8")
A("v_xor_b32 v9, 64, v8\nv_xor_b32 v10, 128, v8\nv_xor_b32 v14, 192, v8")
A("s_lshl_b32 s48, s44, 2\nv_mov_b32 v22, s48")
A("v_lshrrev_b32 v16, 5, v0\ns_lshl_b32 s48, s44, 1\nv_add_u32 v16, s48, v16")
A("v_and_b32 v17, 31, v0\nv_mul_u32_u24 v18, 528, v16\nv_lshl_add_u32 v18, v17, 4, v18\nv_lshlrev_b32 v19, 4, v16")
A("v_lshlrev_b32 v20, 14, v16\nv_lshl_add_u32 v20, v17, 4, v20\nv_lshlrev_b32 v21, 9, v16")
A(f"s_lshl_b32 s48, s45, 8\ns_add_u32 s48, s48, s46\ns_lshl_b32 s58, s48, 9\ns_add_u32 s58, s58, {AP}\ns_lshl_b32 s59, s48, 4\ns_add_u32 s59, s59, {ML}")
A("v_lshlrev_b32 v1, 16, v5\nv_bfe_u32 v13, v0, 4, 1\nv_lshl_add_u32 v1, v13, 12, v1")
A(f"s_lshl_b32 s47, s45, 13\ns_lshr_b32 s48, s46, 2\ns_lshl_b32 s48, s48, 7\ns_add_u32 s47, s47, s48\ns_and_b32 s48, s46, 3\ns_add_u32 s47, s47, s48\ns_add_u32 s47, s47, {HINT}")
A(f"s_lshl_b32 s40, s45, 15\ns_lshl_b32 s48, s44, 13\ns_add_u32 s40, s40, s48\ns_add_u32 s40, s40, {QP}")
A("v_lshl_add_u32 v16, v4, 11, v12")
A("v_lshl_add_u32 v120, v4, 8, v12\nv_add_u32 v120, 7168, v120")
A("v_cmp_eq_u32 vcc, 3, v4\nv_cndmask_b32 v121, 0, 1.0, vcc")
A("v_lshrrev_b32 v17, 1, v4\nv_mul_u32_u24 v17, 272, v17\nv_lshl_add_u32 v17, v13, 7, v17\nv_lshl_add_u32 v17, v5, 3, v17\ns_mul_i32 s61, s44, 544\nv_add_u32 v17, s61, v17")
A("s_lshl_b32 s61, s44, 9")
own_hint_base(None)
A("v_lshrrev_b32 v12, 2, v0")
A("v_and_b32 v13, 7, v12\nv_lshlrev_b32 v13, 1, v13\nv_bfe_u32 v23, v0, 1, 1\nv_xor_b32 v13, v13, v23\nv_lshlrev_b32 v13, 4, v13")
A(f"v_lshl_add_u32 v13, v12, 8, v13\nv_and_b32 v23, 1, v0\nv_lshl_add_u32 v13, v23, 3, v13\ns_add_u32 s48, s49, {L_V-L_K}\nv_add_u32 v13, s48, v13")
A(f"s_mov_b32 s48, {SCALE:#x}\ns_mov_b32 s43, {LOG2E:#x}")
gate()
lds_wait(7, L_CQ, 4, 12, sleep=2)
hint_wait([(62, 128 * i) for i in range(4)], wide=0)
A("s_setprio 3")
stamp(4)
loads = [f"buffer_load_dwordx4 v[{QF}:{QF+3}], v120, s[36:39], s40 offen sc1"] + [f"buffer_load_dwordx4 v[{24+4*k}:{27+4*k}], v16, s[36:39], s40 offen offset:{256*k} sc1" for k in range(4)]
for x in loads: A(x)
lds_wait(22, L_CK, 1, 12, sleep=0)
for T in range(2):
    for t in range(4):
        r = KR + 16 * T + 4 * t
        A(f"ds_read_b128 v[{r}:{r+3}], v{(8,9,10,14)[t]} offset:{4096*T}")
A("v_mul_u32_u24 v10, 272, v3\nv_lshl_add_u32 v10, v4, 4, v10")
A("v_mul_u32_u24 v8, 528, v3\nv_lshl_add_u32 v8, v4, 4, v8\nv_add_u32 v8, s49, v8")
A("v_lshl_add_u32 v9, v3, 4, v22")
stamp(1)
gather_loop(loads, [24, 28, 32, 36, QF], 4, 5, 6, issued=True)
for k in range(4): A(f"v_mov_b32 v{QF+4+k}, v{QF+k}")
for k in range(4): A(f"v_add_f32 v{24+k}, v{24+k}, v{28+k}")
for k in range(4): A(f"v_permlane16_swap_b32 v{QF+4+k}, v{QF+k}")
for k in range(4): A(f"v_add_f32 v{QF+k}, v{QF+k}, v{QF+4+k}")
for k in range(4): A(f"v_mov_b32 v{QF+4+k}, v{QF+k}")
for k in range(4): A(f"v_add_f32 v{32+k}, v{32+k}, v{36+k}")
for k in range(4): A(f"v_permlane32_swap_b32 v{QF+4+k}, v{QF+k}")
for k in range(4): A(f"v_add_f32 v{QF+k}, v{QF+k}, v{QF+4+k}")
for k in range(4): A(f"v_add_f32 v{24+k}, v{24+k}, v{32+k}")
for k in range(4): A(f"v_fmac_f32 v{24+k}, v121, v{QF+k}")
A("v_cvt_pk_bf16_f32 v24, v24, v25\nv_cvt_pk_bf16_f32 v25, v26, v27")
A(f"ds_write_b64 v17, v[24:25] offset:{L_Q}")
lds_inc(L_CQR, wait=False)
stamp(6)
lds_wait(22, L_CV, 1, 12, sleep=0)
for dt in range(8):
    r = VR + 4 * dt
    if dt: A(f"v_xor_b32 v12, {32*dt}, v13")
    va = 12 if dt else 13
    A(f"ds_read_b64_tr_b16 v[{r}:{r+1}], v{va}\nds_read_b64_tr_b16 v[{r+2}:{r+3}], v{va} offset:4096")
stamp(3)
lds_wait(7, L_CQR, 4, 12, sleep=0, extra=[f"ds_read_b128 v[{QF+4*t}:{QF+4*t+3}], v10 offset:{L_Q+64*t}" for t in range(4)])
stamp(2)
for t in range(4):
    for T in range(2):
        r = KR + 16 * T + 4 * t; d = S0 + 4 * T
        A(f"v_mfma_f32_16x16x32_bf16 v[{d}:{d+3}], v[{r}:{r+3}], v[{QF+4*t}:{QF+4*t+3}], {'0' if t == 0 else f'v[{d}:{d+3}]'}")
for k in range(0, 8, 2): A(f"v_cvt_pk_bf16_f32 v{S0+k+1}, v{S0+k}, v{S0+k+1}")
for k in range(0, 8, 2): A(f"v_lshlrev_b32 v{S0+k}, 16, v{S0+k+1}\nv_and_b32 v{S0+k+1}, 0xffff0000, v{S0+k+1}")
for k in range(8): A(f"v_mul_f32 v{S0+k}, s48, v{S0+k}")
for k in range(0, 8, 2): A(f"v_cvt_pk_bf16_f32 v{S0+k+1}, v{S0+k}, v{S0+k+1}")
for k in range(0, 8, 2): A(f"v_lshlrev_b32 v{S0+k}, 16, v{S0+k+1}\nv_and_b32 v{S0+k+1}, 0xffff0000, v{S0+k+1}")
A("v_max3_f32 v32, v24, v25, v26\nv_max3_f32 v33, v27, v28, v29\nv_max3_f32 v32, v32, v30, v31\nv_max_f32 v32, v32, v33")
swapadd(32, 33, 16, "v_max_f32"); swapadd(32, 33, 32, "v_max_f32")
for k in range(8): A(f"v_sub_f32 v{S0+k}, v{S0+k}, v32")
for k in range(8): A(f"v_mul_f32 v{S0+k}, s43, v{S0+k}")
for k in range(8): A(f"v_exp_f32 v{S0+k}, v{S0+k}")
for k in range(4): A(f"v_cvt_pk_bf16_f32 v{36+k}, v{S0+2*k}, v{S0+2*k+1}")
OD = 40
sums = [f"v_add_f32 v{S0+k}, v{S0+k}, v{S0+4+k}" for k in range(4)] + ["v_add_f32 v24, v24, v26", "v_add_f32 v25, v25, v27", "v_add_f32 v24, v24, v25", "v_mov_b32 v25, v24"]
for dt in range(8):
    A(f"v_mfma_f32_16x16x32_bf16 v[{OD+4*dt}:{OD+4*dt+3}], v[{VR+4*dt}:{VR+4*dt+3}], v[36:39], 0")
    A(sums[dt])
A("s_mov_b32 exec_lo, 0x00ff00ff\ns_mov_b32 exec_hi, 0x00ff00ff")
for dt in range(8): A(f"ds_write_b128 v8, v[{OD+4*dt}:{OD+4*dt+3}] offset:{64*dt}")
A("s_mov_b64 exec, -1")
A("v_permlane16_swap_b32 v25, v24\nv_add_f32 v24, v24, v25")
swapadd(24, 25, 32)
A(f"s_mov_b64 exec, 0xff\nds_write_b32 v9, v32 offset:{L_MX}\nds_write_b32 v9, v24 offset:{L_LX}")
lds_inc(L_CA2, wait=False)
stamp(7)
lds_wait(7, L_CA2, 4, 12, sleep=0, extra=[f"ds_read_b128 v[24:27], v19 offset:{L_MX}", f"ds_read_b128 v[28:31], v19 offset:{L_LX}"] +
         [f"ds_read_b128 v[{40+4*w}:{43+4*w}], v18 offset:{L_K+8192*w}" for w in range(4)])
A("v_max3_f32 v32, v24, v25, v26\nv_max_f32 v32, v32, v27")
for w in range(4): A(f"v_sub_f32 v{24+w}, v{24+w}, v32")
for w in range(4): A(f"v_mul_f32 v{24+w}, s43, v{24+w}")
for w in range(4): A(f"v_exp_f32 v{24+w}, v{24+w}")
for k in range(4): A(f"v_mul_f32 v{36+k}, v24, v{40+k}")
for w in range(1, 4):
    for k in range(4): A(f"v_fmac_f32 v{36+k}, v{24+w}, v{40+4*w+k}")
tag_insert(36, 4)
A("buffer_store_dwordx4 v[36:39], v20, s[36:39], s58 offen sc1")
A("v_mul_f32 v33, v24, v28")
for w in range(1, 4): A(f"v_fmac_f32 v33, v{24+w}, v{28+w}")
tag_insert(32, 4)
A("s_mov_b32 exec_lo, 1\ns_mov_b32 exec_hi, 1")
A("buffer_store_dwordx4 v[32:35], v21, s[36:39], s59 offen sc1")
A("s_cmp_lg_u32 s44, 3\ns_cbranch_scc1 L_A_nohint")
A("s_mov_b32 exec_lo, -1\ns_mov_b32 exec_hi, 0")
A(f"buffer_store_byte v{VT}, v1, s[36:39], s47 offen sc1")
A("L_A_nohint:")
stamp(5)
if P["stamps"]:
    A("L_stamps:")
    A("s_mov_b64 exec, 1\ns_waitcnt lgkmcnt(0)")
    srd(36, 26, WS_USED)
    A(f"s_lshl_b32 s46, s2, 4\ns_add_u32 s46, s46, s3\ns_lshl_b32 s46, s46, 5\ns_add_u32 s46, s46, {STAMP}")
    for i in range(8): A(f"v_mov_b32 v{24+i}, s{80+2*i}")
    A("buffer_store_dwordx4 v[24:27], v7, s[36:39], s46 offen\nbuffer_store_dwordx4 v[28:31], v7, s[36:39], s46 offen offset:16")
A("L_end:\ns_endpgm")
A("L_code_end:")
if P["nopub"]: A.L = [l for l in A.L if not (l.startswith("buffer_store_") and l.endswith("sc1"))]
if P["nogather"]: A.L = [l for l in A.L if not (l.startswith("buffer_load_dwordx4") and l.endswith("sc1"))]
if P["nopoll"]: A.L = [l for l in A.L if not (l.startswith("s_load_dword") and l.endswith("glc"))]
A.L = hazard.fix(A.L)
A.footer(124, 96)
A.L.insert(A.L.index(".end_amdhsa_kernel"), "  .amdhsa_float_denorm_mode_32 3")
A.write(OUT)
```

```python
import sys
from asmlib import *
import hazard

P = dict(stamps=0, pol="nt", D=5, DY=6, DF=5, B0=8, eQ=0, eG=0, eA=0, DQ=0, DFY=0, DGY=0, freeA=0, freeB=0, GX=22, h1trig=7, h3s=0, h3sleep=0, h2share=0, ypause=-1, qmask=1, gmask=1, h2trig=-1, hgtrig=-1, sdelay=0, osc=0, spin=400000, prefetch=1, hsleep=1, tfix=0, free=0,
         nopub=0, nogather=0, nopoll=0)
for a in sys.argv[2:]:
    k, v = a.split("=")
    assert k in P, k
    P[k] = v if k == "pol" else int(v)
OUT = sys.argv[1]
LSPIN = P["spin"] * 4
if P["free"]: P["spin"] = 1

EPA, ML, AP, GP, OP, HINT, QP, EPB, STAMP = 0x0, 0x1000, 0x15000, 0x95000, 0xB1000, 0x100000, 0x200000, 0x220000, 0x240000
WS_USED = 0x300000
L_FX, L_TAG, L_CQ, L_CG, L_CK, L_CV, L_CQR, L_CA2, L_CO, L_FH, L_CI, L_EQ, L_EG = 0, 4, 8, 12, 16, 32, 48, 52, 56, 60, 64, 68, 72
L_MX, L_LX = 0x100, 0x180
L_XN, L_OV = 0x400, 0xC00
L_REDQ, L_REDG, L_Q, L_K, L_V = 0xE00, 0x1600, 0x1E00, 0x3000, 0xB000
LDS_BYTES = 0x14400
DPPM = "row_mask:0xf bank_mask:0xf"
LOG2E = 0x3fb8aa3b
SCALE = 0x3db504f3

A = Asm()
A.header(256, 768, LDS_BYTES)
_uid = [0]
def lab(p):
    _uid[0] += 1
    return f"L_{p}_{_uid[0]}"
def stamp(i):
    if P["stamps"]: A(f"s_memrealtime s[{80+2*i}:{81+2*i}]")
def srd(d, base, size):
    A(f"s_mov_b32 s{d}, s{base}\ns_mov_b32 s{d+1}, s{base+1}\ns_mov_b32 s{d+2}, {size:#x}\ns_mov_b32 s{d+3}, 0x20000")
def lds_wait(vaddr, off, val, vt, sleep=1, extra=()):
    l = lab("lw"); e = lab("lwd")
    A(f"s_mov_b32 s60, {LSPIN}")
    A(f"{l}:\nds_read_b32 v{vt}, v{vaddr} offset:{off}")
    for x in extra: A(x)
    A(f"s_waitcnt lgkmcnt(0)\nv_readfirstlane_b32 s61, v{vt}")
    A(f"s_cmp_ge_u32 s61, {val}\ns_cbranch_scc1 {e}")
    if sleep: A(f"s_sleep {sleep}")
    A(f"s_sub_u32 s60, s60, 1\ns_cmp_lg_u32 s60, 0\ns_cbranch_scc1 {l}\n{e}:")
VT = 11
def hint_wait(loads, wide=None):
    l = lab("hw"); e = lab("hwd")
    A("s_and_b32 s56, s31, 0xff\ns_mul_i32 s56, s56, 0x01010101")
    A(f"s_mov_b32 s60, {P['spin']}")
    A(f"{l}:")
    regs = []
    if wide is not None:
        b, o = loads[-1]; loads = loads[:-1]
        A(f"s_load_dwordx2 s[68:69], s[{b}:{b+1}], {o} glc"); regs += [68, 69]
    for i, (b, o) in enumerate(loads):
        A(f"s_load_dword s{64+i}, s[{b}:{b+1}], {o} glc"); regs.append(64 + i)
    A("s_waitcnt lgkmcnt(0)")
    for i, r in enumerate(regs):
        A(f"s_xor_b32 s{r}, s{r}, s56")
        if i: A(f"s_or_b32 s{regs[0]}, s{regs[0]}, s{r}")
    A(f"s_cbranch_scc0 {e}")
    if P["hsleep"]: A(f"s_sleep {P['hsleep']}")
    A(f"s_sub_u32 s60, s60, 1\ns_cmp_lg_u32 s60, 0\ns_cbranch_scc1 {l}\n{e}:")
def tag_insert(vreg, n):
    for k in range(n): A(f"v_perm_b32 v{vreg+k}, v{vreg+k}, v{VT}, s{52+(k&3)}")
def tag_check(bases, vt0, vt1, vacc):
    first = True
    for b in bases:
        A(f"v_perm_b32 v{vt0}, v{b+1}, v{b}, s50\nv_perm_b32 v{vt1}, v{b+3}, v{b+2}, s51")
        if first:
            A(f"v_bitop3_b32 v{vacc}, v{vt0}, v{vt1}, v{VT} bitop3:0x56"); first = False
        else:
            A(f"v_bitop3_b32 v{vt0}, v{vt0}, v{vt1}, v{VT} bitop3:0x56\nv_or_b32 v{vacc}, v{vacc}, v{vt0}")
def gather_loop(loads, bases, vt0, vt1, vacc, sleep=0, issued=False):
    l = lab("gl"); e = lab("gld"); c = lab("glc")
    A(f"s_mov_b32 s60, {P['spin']}")
    if issued: A(f"s_branch {c}")
    A(f"{l}:")
    for x in loads: A(x)
    A(f"{c}:")
    n = len(bases)
    for i, b in enumerate(bases):
        A(f"s_waitcnt vmcnt({n-1-i})")
        for k in range(4): A(f"v_xor_b32 v{b+k}, s{74+k}, v{b+k}")
        if i == 0:
            A(f"v_or3_b32 v{vacc}, v{b}, v{b+1}, v{b+2}\nv_or_b32 v{vacc}, v{vacc}, v{b+3}")
        else:
            A(f"v_or3_b32 v{vacc}, v{vacc}, v{b}, v{b+1}\nv_or3_b32 v{vacc}, v{vacc}, v{b+2}, v{b+3}")
    A(f"v_and_b32 v{vacc}, 0xff, v{vacc}")
    A(f"v_cmp_ne_u32 vcc, 0, v{vacc}")
    A(f"s_and_b64 exec, exec, vcc\ns_cbranch_scc0 {e}")
    if sleep: A(f"s_sleep {sleep}")
    A(f"s_sub_u32 s60, s60, 1\ns_cmp_lg_u32 s60, 0\ns_cbranch_scc1 {l}\n{e}:")
    A("s_mov_b64 exec, -1")
def swapadd(v, t, which, op="v_add_f32"):
    A(f"v_mov_b32 v{t}, v{v}\nv_permlane{which}_swap_b32 v{t}, v{v}\n{op} v{v}, v{v}, v{t}")
def swapadd_n(v, t, n, which, op="v_add_f32"):
    for k in range(n): A(f"v_mov_b32 v{t+k}, v{v+k}")
    for k in range(n): A(f"v_permlane{which}_swap_b32 v{t+k}, v{v+k}")
    for k in range(n): A(f"{op} v{v+k}, v{v+k}, v{t+k}")
def allsum(v, t):
    for m in ("quad_perm:[1,0,3,2]", "quad_perm:[2,3,0,1]", "row_half_mirror", "row_mirror"):
        A(f"v_add_f32_dpp v{v}, v{v}, v{v} {m} {DPPM}")
    swapadd(v, t, 16); swapadd(v, t, 32)
def bf16r(v):
    A(f"v_cvt_pk_bf16_f32 v{v}, v{v}, v{v}\nv_lshlrev_b32 v{v}, 16, v{v}")
def lds_inc(off, wait=True, va=7):
    A("s_mov_b64 exec, 1" + ("\ns_waitcnt lgkmcnt(0)" if wait else "") + f"\nds_add_u32 v{va}, v15 offset:{off}\ns_mov_b64 exec, -1")
def finish():
    A("s_branch L_stamps" if P["stamps"] else "s_endpgm")
def common_regs():
    srd(36, 26, WS_USED)
    for k in range(4): A(f"s_mov_b32 s{52+k}, {0x07060500+k:#x}")
def tag_bytes():
    A("s_and_b32 s74, s31, 0xff\ns_bfe_u32 s75, s31, 0x80008\ns_bfe_u32 s76, s31, 0x80010\ns_lshr_b32 s77, s31, 24")
def get_tag():
    A(f"ds_read_b32 v{VT}, v7 offset:{L_TAG}\ns_waitcnt lgkmcnt(0)\nv_readfirstlane_b32 s31, v{VT}")
def gate():
    A("s_barrier"); get_tag(); tag_bytes()
def own_hint_base(extra=0):
    A(f"s_lshl_b32 s62, s2, 12\ns_add_u32 s62, s62, {HINT}")
    if extra is None: A("s_add_u32 s62, s62, s61")
    elif extra: A(f"s_add_u32 s62, s62, {extra}")
    A("s_add_u32 s62, s26, s62\ns_addc_u32 s63, s27, 0")
pol = P["pol"]
D = P["D"]; DF = P["DF"]
XPQ, XPG, SEL, OPB, ACC, QW, FW = 16, 20, 32, 40, 48, 52, 52
DY = P["DY"]; B0 = P["B0"]
def sync0():
    A("s_waitcnt lgkmcnt(0)\ns_barrier")
def build_op(dst, xp, t):
    for d in range(4):
        A(f"v_perm_b32 v{dst+d}, v{xp+(t>>1)}, v{xp+(t>>1)}, v{SEL+2*d+(t&1)}")
def mfma(op, w, first):
    A(f"v_mfma_f32_16x16x32_bf16 v[{ACC}:{ACC+3}], v[{op}:{op+3}], v[{w}:{w+3}], {'0' if first else f'v[{ACC}:{ACC+3}]'}")
def red_write(base, cnt):
    A("s_mov_b32 exec_lo, 0x00ff00ff\ns_mov_b32 exec_hi, 0xff00ff00")
    A(f"ds_write_b128 v1, v[{ACC}:{ACC+3}] offset:{base}")
    lds_inc(cnt, wait=False)

A("s_cmp_ge_u32 s2, 256\ns_cbranch_scc1 L_end")
A("s_load_dwordx16 s[4:19], s[0:1], 0\ns_load_dwordx8 s[20:27], s[0:1], 64")
A("v_lshrrev_b32 v1, 6, v0\nv_and_b32 v0, 63, v0\nv_readfirstlane_b32 s3, v1")
A("v_mov_b32 v7, 0\nv_mov_b32 v15, 1\ns_add_u32 s3, s3, 12\ns_and_b32 s3, s3, 15")
if P["stamps"]:
    for i in range(1, 8): A(f"s_mov_b32 s{80+2*i}, 0")
stamp(0)
if P["tfix"]: A("s_memrealtime s[94:95]")
A("s_and_b32 s28, s2, 7\ns_lshr_b32 s29, s2, 3\ns_lshr_b32 s30, s2, 4\ns_and_b32 s44, s3, 3")
A("v_lshrrev_b32 v2, 3, v0\nv_and_b32 v3, 7, v0\ns_mov_b32 s35, 0x20000\ns_mov_b32 s43, 0x20000")
A("s_cmp_lt_u32 s3, 4\ns_cbranch_scc1 L_S")
A("s_cmp_eq_u32 s3, 12\ns_cbranch_scc1 L_x")
A("s_cmp_lg_u32 s3, 13\ns_cbranch_scc1 L_other")
if P["prefetch"]:
    A("s_getpc_b64 s[40:41]\nL_pc:")
    A(f"s_mov_b32 s42, L_code_end-L_pc\nv_lshlrev_b32 v4, 7, v0\ns_movk_i32 s46, 0x2000")
    A("buffer_load_dword v40, v4, s[40:43], 0 offen\nbuffer_load_dword v40, v4, s[40:43], s46 offen")
A("s_branch L_other")
A("L_x:")
A("s_setprio 3")
A("v_lshlrev_b32 v5, 5, v0\ns_movk_i32 s42, 2048")
A("s_waitcnt lgkmcnt(0)\ns_mov_b32 s40, s4\ns_mov_b32 s41, s5")
A("buffer_load_dwordx4 v[16:19], v5, s[40:43], 0 offen\nbuffer_load_dwordx4 v[20:23], v5, s[40:43], 0 offen offset:16")
A("s_branch L_ln")
A("L_S:")
A("s_setprio 3")
A("s_and_b32 s45, s29, 3\ns_lshl_b32 s48, s45, 2\ns_add_u32 s48, s48, s44\ns_lshr_b32 s47, s29, 2")
A("s_lshr_b32 s46, s29, 4\ns_lshl_b32 s46, s46, 2\ns_add_u32 s45, s45, s46\ns_lshl_b32 s45, s45, 1\ns_and_b32 s46, s44, 1\ns_add_u32 s45, s45, s46")
A("s_lshl_b32 s46, s44, 1\ns_or_b32 s46, s46, 3\ns_and_b32 s49, s47, 3\ns_cmp_eq_u32 s49, 3\ns_cselect_b32 s48, s45, s48\ns_cselect_b32 s47, s46, s47")
A("s_lshl_b32 s48, s48, 6\ns_lshl_b32 s46, s28, 3\ns_add_u32 s47, s47, s46\ns_lshl_b32 s47, s47, 7")
A(f"s_lshl_b32 s46, s48, 13\ns_add_u32 s60, s47, s46\ns_mov_b32 s38, {8<<20:#x}\ns_mov_b32 s39, 0x20000")
A("v_lshlrev_b32 v4, 16, v2\nv_lshl_add_u32 v4, v3, 4, v4")
A("s_waitcnt lgkmcnt(0)")
A("s_mov_b32 s36, s10\ns_mov_b32 s37, s11")
def q_issue(t):
    def f():
        A(f"buffer_load_dwordx4 v[{QW+4*t}:{QW+4*t+3}], v4, s[36:39], s60 offen {pol}")
        if t < 7: A("s_add_u32 s60, s60, 0x2000")
    return f
if not P["sdelay"]:
    for t in range(B0): q_issue(t)()
    stamp(1)
A("s_lshr_b32 s46, s30, 1\ns_add_u32 s47, s46, 1\ns_cmp_eq_u32 s47, 7\ns_cselect_b32 s47, 0, s47")
A("s_cmp_ge_u32 s44, 2\ns_cselect_b32 s46, s47, s46\ns_cselect_b32 s32, s18, s16\ns_cselect_b32 s33, s19, s17")
A("s_mul_i32 s47, s28, 7\ns_add_u32 s46, s46, s47\ns_lshl_b32 s49, s46, 7")
A(f"s_cmp_ge_u32 s30, 14\ns_cselect_b32 s34, 0, {7<<20:#x}")
GX = P["GX"]; GY = 32 - GX
assert GX % 2 == 0 and GX <= 24
A("s_and_b32 s45, s30, 1\ns_lshl_b32 s45, s45, 1\ns_and_b32 s46, s44, 1\ns_add_u32 s45, s45, s46")
A("s_lshl_b32 s56, s28, 2\ns_lshr_b32 s46, s30, 2\ns_add_u32 s56, s56, s46")
A("s_and_b32 s46, s30, 3\ns_lshl_b32 s57, s46, 9\ns_lshl_b32 s46, s44, 7\ns_add_u32 s57, s57, s46")
if P["sdelay"]:
    for t in range(B0): q_issue(t)()
    stamp(1)
A("s_bitcmp1_b32 s29, 0\ns_cbranch_scc1 L_SY")

def post_burst(ng, D):
    A("v_and_b32 v16, 1, v3\nv_cmp_eq_u32 vcc, 1, v16")
    A("v_mov_b32 v16, 0x0c0c0100\nv_mov_b32 v17, 0x01000c0c\nv_cndmask_b32 v16, v16, v17, vcc")
    A("v_mov_b32 v17, 0x0c0c0302\nv_mov_b32 v18, 0x03020c0c\nv_cndmask_b32 v17, v17, v18, vcc")
    A("v_lshrrev_b32 v18, 1, v3\nv_mov_b32 v19, 0x0c0c0c0c")
    for d in range(4):
        A(f"v_cmp_eq_u32 vcc, {d}, v18")
        A(f"v_cndmask_b32 v{SEL+2*d}, v19, v16, vcc\nv_cndmask_b32 v{SEL+2*d+1}, v19, v17, vcc")
    A("v_bfe_u32 v16, v0, 4, 1\nv_lshl_add_u32 v16, v3, 1, v16\nv_lshrrev_b32 v1, 5, v0\nv_lshlrev_b32 v1, 8, v1\nv_lshl_add_u32 v1, v16, 4, v1")
    A("s_lshl_b32 s46, s44, 9\nv_add_u32 v1, s46, v1")
    A(f"s_lshl_b32 s48, s48, 1\ns_lshl_b32 s59, s59, 1\ns_add_u32 s59, s59, {L_XN}\nv_lshlrev_b32 v{OPB}, 4, v2\nv_mul_u32_u24 v{OPB+1}, {2*ng}, v2\nv_add_u32 v{OPB+1}, s59, v{OPB+1}\nv_add_u32 v{OPB}, s48, v{OPB}")
    A(f"v_mul_u32_u24 v5, {ng*7168}, v2\nv_lshl_add_u32 v5, v3, 4, v5")
    A("s_barrier")
    stamp(2)
    A(f"ds_read_b128 v[{XPQ}:{XPQ+3}], v{OPB} offset:{L_XN}")
    for g in range(0, ng // 2, 2): A(f"ds_read2_b32 v[{XPG+g}:{XPG+g+1}], v{OPB+1} offset0:{g} offset1:{g+1}")
    A("s_waitcnt lgkmcnt(0)")

def run_stream(seq, pre):
    n = len(seq); nextp = 0
    for k in range(pre, n):
        dd = seq[k][2]
        while nextp < k - dd:
            if seq[nextp][1]:
                A(f"s_waitcnt vmcnt({k-1-nextp})"); seq[nextp][1]()
            nextp += 1
        A(f"s_waitcnt vmcnt({dd-1})")
        seq[k][0]()
        while nextp <= k - dd:
            if seq[nextp][1]: seq[nextp][1]()
            nextp += 1
    while nextp < n:
        if seq[nextp][1]:
            A(f"s_waitcnt vmcnt({n-1-nextp})"); seq[nextp][1]()
        nextp += 1
def q_proc(t):
    def f():
        build_op(OPB + 4 * (t & 1), XPQ, t)
        mfma(OPB + 4 * (t & 1), QW + 4 * t, t == 0)
        if P["eQ"] and t == 7 - P["eQ"]: lds_inc(L_EQ, wait=False)
        if t == 7:
            red_write(L_REDQ, L_CQ); stamp(3)
    return f
def qseq(d): return [[q_issue(t), q_proc(t), P["DQ"] or d] for t in range(8)]

A(f"s_mul_i32 s59, s45, {8*GX}\ns_mul_i32 s47, s59, 7168\ns_add_u32 s47, s47, s49")
def gslot(g): return FW + 4 * (8 + g % 8)
def g_issue(g, n, slot):
    def f():
        A(f"buffer_load_dwordx4 v[{slot}:{slot+3}], v5, s[32:35], s47 offen {pol}")
        if g < n - 1: A("s_add_u32 s47, s47, 7168")
    return f
def g_proc(g, n, slot, first_extra=None):
    def f():
        if first_extra: first_extra()
        build_op(OPB + 4 * (g & 1), XPG, g)
        mfma(OPB + 4 * (g & 1), slot, g == 0)
        if P["eG"] and g == n - 1 - P["eG"]: lds_inc(L_EG, wait=False)
        if g == n - 1: g_done()
    return f
def f_issue(t, last):
    def f():
        A(f"buffer_load_dwordx4 v[{FW+4*t}:{FW+4*t+3}], v6, s[40:43], s58 offen offset:{2048*(t&1)} {pol}")
        if t & 1 and t < last: A("s_add_u32 s58, s58, 4096")
    return f
def g_done():
    red_write(L_REDG, L_CG); stamp(4)
def q_done():
    red_write(L_REDQ, L_CQ)
seq = [[g_issue(g, GX, gslot(g)), g_proc(g, GX, gslot(g)), D] for g in range(GX)]
seq += [[f_issue(t, 15), None, DF] for t in range(16)]
for t in range(D): seq[GX+t][2] = D
if P["h2trig"] >= 0: seq[GX+P["h2trig"]][1] = lambda: lds_inc(L_EQ, wait=False)
seq = qseq(D) + seq
A(f"s_mov_b32 s40, s12\ns_mov_b32 s41, s13\ns_mov_b32 s42, {8<<20:#x}\ns_lshl_b32 s58, s56, 18\ns_add_u32 s58, s58, s57")
A("v_lshlrev_b32 v6, 15, v2\nv_lshl_add_u32 v6, v3, 4, v6")
post_burst(GX, D)
run_stream(seq, B0)
A(f"s_mov_b32 s45, {L_CO}\ns_mov_b32 s46, {0 if P['freeA'] else 4}\ns_mov_b32 s49, 0")
A("s_branch L_F")
A("L_SY:")
A("s_lshr_b32 s47, s28, 1\ns_lshl_b32 s47, s47, 23\ns_and_b32 s46, s28, 1\ns_lshl_b32 s46, s46, 4\ns_add_u32 s46, s46, s30\ns_lshl_b32 s46, s46, 15\ns_add_u32 s47, s47, s46")
A(f"s_lshl_b32 s46, s44, 13\ns_add_u32 s58, s47, s46\ns_add_u32 s58, s58, {28672*256}\ns_add_u32 s61, s46, {L_K}")
A("v_lshrrev_b32 v16, 4, v0\nv_and_b32 v17, 15, v0")
A("v_xor_b32 v8, v17, v16\nv_lshlrev_b32 v8, 4, v8\nv_lshl_add_u32 v8, v16, 8, v8")
A("v_xor_b32 v9, 64, v8\nv_xor_b32 v10, 128, v8\nv_xor_b32 v14, 192, v8")
A("v_lshlrev_b32 v12, 1, v16\nv_xor_b32 v12, v17, v12\nv_lshlrev_b32 v12, 4, v12\nv_lshl_add_u32 v12, v16, 8, v12\nv_xor_b32 v13, 128, v12")
A(f"s_mov_b32 s40, s6\ns_mov_b32 s41, s7\ns_mov_b32 s42, {32<<20:#x}")
A(f"s_mul_i32 s59, s45, {8*GY}\ns_add_u32 s59, s59, {32*GX}\ns_mul_i32 s47, s59, 7168\ns_add_u32 s47, s47, s49")
A("s_lshl_b32 s46, s44, 2\nv_mov_b32 v11, s46")
def kv_issue(i):
    def f():
        mat, ii = i // 8, i % 8
        if i == 8: A("s_mov_b32 s40, s8\ns_mov_b32 s41, s9\ns_sub_u32 s58, s58, 8192")
        if ii % 4 == 0:
            A(f"s_add_u32 m0, s61, {(L_V - L_K) * mat + 4096 * (ii // 4)}")
            if i: A("s_add_u32 s58, s58, 4096")
        va = (8, 9, 10, 14)[ii & 3] if mat == 0 else (12 + (ii & 1))
        A(f"buffer_load_dwordx4 v{va}, s[40:43], s58 offen offset:{1024*(ii&3)} {pol} lds")
        if i == 15:
            A(f"s_mov_b32 s40, s20\ns_mov_b32 s41, s21\ns_mov_b32 s42, {7<<20:#x}\ns_mul_i32 s58, s56, {112*2048}\ns_add_u32 s58, s58, s57")
    return f
seq = [[kv_issue(i), None, DY] for i in range(16)]
seq[7][1] = lambda: lds_inc(L_CK, wait=False, va=11)
if P["h1trig"] >= 0:
    prev = seq[P["h1trig"]][1]
    def trig():
        if prev: prev()
        lds_inc(L_EQ, wait=False)
    seq[P["h1trig"]][1] = trig
def v_done():
    lds_inc(L_CV, wait=False, va=11); stamp(5)
seq[15][1] = v_done
DGY = P["DGY"] or D
seq += [[g_issue(g, GY, gslot(g)), g_proc(g, GY, gslot(g)), DGY] for g in range(GY)]
if P["ypause"] >= 0:
    k0 = 16 + P["ypause"]
    previ = seq[k0][0]
    def pz():
        v_done()
        lds_wait(7, L_CQR, 4, 4, sleep=1)
        previ()
    seq[k0][0] = pz
    seq[15][1] = None
    seq[k0][2] = 1 + P["ypause"]
DFY = P["DFY"] or DF
seq += [[f_issue(t, 15), None, DFY] for t in range(2, 16)]
for t in range(DGY): seq[16+GY+t][2] = DGY
if P["hgtrig"] >= 0: seq[16+GY+P["hgtrig"]][1] = lambda: lds_inc(L_EG, wait=False)
assert DGY <= 6
seq = qseq(DY) + seq
A(f"v_mul_u32_u24 v6, {14*2048}, v2\nv_lshl_add_u32 v6, v3, 4, v6")
post_burst(GY, DY)
run_stream(seq, B0)
A(f"s_mov_b32 s45, {L_FH}\ns_mov_b32 s46, {0 if P['freeB'] else 1}\ns_mov_b32 s49, 4096")
A("L_F:")
stamp(5) if False else None
A(f"s_lshl_b32 s58, s57, 7\ns_lshl_b32 s48, s56, 7\ns_add_u32 s58, s58, s48\ns_add_u32 s58, s58, s49\ns_add_u32 s58, s58, {OP}")
common_regs(); get_tag()
A("v_mov_b32 v6, s45\nv_lshlrev_b32 v5, 5, v2")
A("v_bfe_u32 v10, v0, 4, 1\nv_lshl_add_u32 v12, v3, 1, v10\nv_and_b32 v13, 7, v12\nv_lshlrev_b32 v13, 4, v13\nv_lshrrev_b32 v12, 3, v12\nv_lshl_add_u32 v13, v12, 13, v13")
for k in range(4): A(f"v_mov_b32 v{ACC+k}, 0")
stamp(6)
lds_wait(6, 0, "s46", 10, sleep=0, extra=[f"ds_read_b128 v[16:19], v5 offset:{L_OV}", f"ds_read_b128 v[20:23], v5 offset:{L_OV+16}"])
OB = [OPB, OPB + 4, 24, 28]
A("s_cmp_lg_u32 s49, 0\ns_cbranch_scc1 L_mm2")
build_op(OB[0], 16, 0); build_op(OB[1], 16, 1)
build_op(OB[2], 16, 2)
mfma(OB[0], FW, False)
build_op(OB[3], 16, 3)
mfma(OB[1], FW + 4, False)
A("s_branch L_mm3")
A("L_mm2:")
build_op(OB[2], 16, 2); build_op(OB[3], 16, 3)
A("L_mm3:")
for t in range(2, 16):
    if t + 2 < 16: build_op(OB[(t + 2) & 3], 16, t + 2)
    if 15 - t < max(DF, DFY): A(f"s_waitcnt vmcnt({15-t})")
    mfma(OB[t & 3], FW + 4 * t, False)
for k in range(4): A(f"v_mov_b32 v{24+k}, v{ACC+k}")
for k in range(4): A(f"v_permlane32_swap_b32 v{24+k}, v{ACC+k}")
for k in range(4): A(f"v_add_f32_dpp v{24+k}, v{ACC+k}, v{24+k} row_ror:8 {DPPM}")
tag_insert(24, 4)
A("s_mov_b64 exec, 0x00ff00ff")
A("buffer_store_dwordx4 v[24:27], v13, s[36:39], s58 offen sc1")
lds_inc(L_CI, wait=False)
stamp(7)
finish()
A("L_ln:")
A("s_setprio 3")
A(f"s_add_u32 s62, s26, {EPB}\ns_addc_u32 s63, s27, 0")
A(f"s_load_dword s31, s[26:27], {EPA}\ns_load_dword s57, s[62:63], 0")
A("s_waitcnt vmcnt(0)")
stamp(1)
for k in range(8): A(f"v_lshlrev_b32 v{24+2*k}, 16, v{16+k}\nv_and_b32 v{25+2*k}, 0xffff0000, v{16+k}")
for k in range(8): A(f"v_add_f32 v{40+k}, v{24+2*k}, v{25+2*k}")
for k in range(4): A(f"v_add_f32 v{40+k}, v{40+k}, v{44+k}")
A("v_add_f32 v40, v40, v42\nv_add_f32 v41, v41, v43\nv_add_f32 v6, v40, v41")
allsum(6, 13)
A("v_mul_f32 v6, 0x3a800000, v6")
for k in range(16): A(f"v_sub_f32 v{40+k}, v{24+k}, v6")
A("v_mul_f32 v10, v40, v40\nv_mul_f32 v12, v41, v41")
for k in range(2, 16): A(f"v_fmac_f32 v{10+2*(k&1)}, v{40+k}, v{40+k}")
A("v_add_f32 v10, v10, v12")
allsum(10, 13)
A("v_mul_f32 v10, 0x3a800000, v10")
bf16r(6); bf16r(10)
A("v_add_f32 v10, 0x3727c5ac, v10")
bf16r(10)
A("v_sqrt_f32 v10, v10")
for k in range(16): A(f"v_sub_f32 v{24+k}, v{24+k}, v6")
bf16r(10)
A("v_rcp_f32 v10, v10")
for k in range(8): A(f"v_cvt_pk_bf16_f32 v{16+k}, v{24+2*k}, v{25+2*k}")
for k in range(8):
    a, b = 24 + 2 * k, 25 + 2 * k
    A(f"v_lshlrev_b32 v{a}, 16, v{16+k}\nv_and_b32 v{b}, 0xffff0000, v{16+k}")
    A(f"v_mul_f32 v{a}, v{a}, v10\nv_mul_f32 v{b}, v{b}, v10")
    A(f"v_cvt_pk_bf16_f32 v{16+k}, v{a}, v{b}")
A(f"ds_write_b128 v5, v[16:19] offset:{L_XN}\nds_write_b128 v5, v[20:23] offset:{L_XN+16}")
A("s_waitcnt lgkmcnt(0)")
A("s_mul_i32 s31, s31, 0x9E3779B5\ns_mul_i32 s57, s57, 0x85EBCA6C\ns_add_u32 s31, s31, s57\ns_add_u32 s31, s31, 0x6A09E667")
A(f"v_mov_b32 v{VT}, s31\nds_write_b32 v7, v{VT} offset:{L_TAG}")
stamp(2)
A("s_waitcnt lgkmcnt(0)\ns_barrier")
common_regs(); tag_bytes()
A("s_branch L_H3")
A("L_other:")
A("s_setprio 2")
A("v_lshlrev_b32 v4, 2, v0\ns_mov_b64 exec, 0x7ffffffc\nds_write_b32 v4, v7\ns_mov_b64 exec, -1")
A("s_waitcnt lgkmcnt(0)")
common_regs()
A("v_and_b32 v12, 15, v0\nv_lshlrev_b32 v12, 4, v12\nv_lshrrev_b32 v10, 4, v0\nv_lshl_add_u32 v14, v10, 9, v12")
A("s_cmp_lt_u32 s3, 8\ns_cbranch_scc1 L_gath")
A("s_cmp_eq_u32 s3, 14\ns_cbranch_scc1 L_Gred")
A("s_cmp_eq_u32 s3, 15\ns_cbranch_scc1 L_HG")
A("s_lshr_b32 s47, s29, 2\ns_and_b32 s45, s29, 3\ns_lshr_b32 s46, s29, 4\ns_lshl_b32 s46, s46, 2\ns_add_u32 s46, s46, s45")
A("s_and_b32 s49, s47, 3\ns_cmp_eq_u32 s49, 3\ns_cselect_b32 s45, s46, s45\ns_cselect_b32 s47, 3, s47\ns_cselect_b32 s41, -1, 0\ns_cselect_b32 s40, 0xffff, 0")
A("s_lshl_b32 s46, s28, 3\ns_add_u32 s47, s47, s46")
A(f"s_lshl_b32 s58, s47, 11\ns_lshl_b32 s46, s45, 8\ns_add_u32 s58, s58, s46\ns_add_u32 s58, s58, {QP}")
A("v_lshrrev_b32 v5, 5, v0\nv_lshl_add_u32 v12, v5, 13, v12")
A("v_and_b32 v1, 15, v0\nv_lshlrev_b32 v1, 16, v1\nv_lshl_add_u32 v1, v5, 9, v1\nv_bfe_u32 v5, v0, 4, 1\nv_lshl_add_u32 v1, v5, 12, v1")
A(f"s_andn2_b32 s59, s28, 1\ns_lshl_b32 s59, s59, 12\ns_and_b32 s46, s47, 15\ns_lshl_b32 s46, s46, 7\ns_add_u32 s59, s59, s46\ns_add_u32 s59, s59, s45\ns_add_u32 s59, s59, {HINT+8*4096}")
gate()
lds_wait(7, L_CQ, 4, 13, sleep=0, extra=[f"ds_read_b128 v[24:27], v14 offset:{L_REDQ}", f"ds_read_b128 v[28:31], v14 offset:{L_REDQ+256}"])
for k in range(4): A(f"v_add_f32 v{24+k}, v{24+k}, v{28+k}")
swapadd_n(24, 28, 4, 16)
A("s_cmp_eq_u32 s49, 3\ns_cbranch_scc1 L_qsp")
swapadd_n(24, 28, 4, 32)
A("L_qsp:")
if P["qmask"]:
    for k in range(4): A(f"v_add_u32 v{24+k}, 0x80, v{24+k}")
tag_insert(24, 4)
A("s_mov_b32 exec_lo, 0xffff\ns_mov_b32 exec_hi, s40")
A("buffer_store_dwordx4 v[24:27], v12, s[36:39], s58 offen sc1")
if P["h1trig"] < 0:
    A("s_mov_b32 exec_lo, -1\ns_mov_b32 exec_hi, s41")
    A(f"buffer_store_byte v{VT}, v1, s[36:39], s59 offen sc1")
stamp(3)
finish()
A("L_gath:")
A("s_bitcmp1_b32 s29, 0\ns_cbranch_scc0 L_H2")
A("s_branch L_A2")
A("L_HG:")
A("s_bitcmp1_b32 s29, 0\ns_cbranch_scc0 L_idle")
A("s_lshr_b32 s45, s30, 2\ns_mul_i32 s46, s45, 112")
A("v_lshrrev_b32 v8, 1, v0\nv_min_u32 v8, 27, v8\nv_lshl_add_u32 v8, v8, 2, s46")
A("v_lshrrev_b32 v9, 6, v8\nv_and_b32 v8, 63, v8\nv_lshlrev_b32 v8, 2, v8\nv_lshl_add_u32 v8, v9, 11, v8\nv_and_b32 v9, 1, v0\nv_lshl_add_u32 v8, v9, 8, v8")
A(f"s_mul_i32 s58, s28, {7*2048}\ns_add_u32 s58, s58, {GP}")
A("v_mul_u32_u24 v10, 37, v0\nv_lshrrev_b32 v10, 8, v10\nv_add_u32 v10, v10, v0\nv_lshlrev_b32 v10, 2, v10")
A("s_lshl_b32 s61, s45, 1\ns_sub_u32 s61, s61, 1\ns_max_i32 s61, s61, 0\ns_min_u32 s61, s61, 4\ns_lshl_b32 s61, s61, 7\ns_add_u32 s61, s61, 2048")
own_hint_base(None)
gate()
if P["hgtrig"] >= 0: A("s_cmp_lt_u32 s30, 14\ns_cbranch_scc1 L_hgloc")
lds_wait(7, L_EG if P["eG"] else L_CG, 4, 13, sleep=2)
hint_wait([(62, 128 * i) for i in range(4)])
if P["hgtrig"] >= 0:
    A("s_branch L_hggo\nL_hgloc:")
    lds_wait(7, L_EG, 4, 13, sleep=2)
    A("L_hggo:")
stamp(6)
gather_loop([f"buffer_load_dwordx4 v[{24+4*k}:{27+4*k}], v8, s[36:39], s58 offen offset:{(0,1024,512,1536)[k]} sc1" for k in range(4)], [24, 28, 32, 36], 4, 5, 6)
for k in range(8): A(f"v_add_f32 v{24+k}, v{24+k}, v{32+k}")
for k in range(8): A(f"v_add_f32_dpp v{24+k}, v{24+k}, v{24+k} quad_perm:[1,0,3,2] {DPPM}")
A("v_cmp_eq_u32 vcc, 1, v9")
A("v_cndmask_b32 v24, v24, v26, vcc\nv_cndmask_b32 v25, v25, v27, vcc\nv_cndmask_b32 v28, v28, v30, vcc\nv_cndmask_b32 v29, v29, v31, vcc")
A("v_cvt_pk_bf16_f32 v25, v24, v25\nv_cvt_pk_bf16_f32 v29, v28, v29")
A("v_lshlrev_b32 v24, 16, v25\nv_and_b32 v25, 0xffff0000, v25\nv_lshlrev_b32 v28, 16, v29\nv_and_b32 v29, 0xffff0000, v29")
A(f"v_mul_f32 v26, {(LOG2E ^ 0x80000000):#x}, v24\nv_mul_f32 v27, {(LOG2E ^ 0x80000000):#x}, v25\nv_exp_f32 v26, v26\nv_exp_f32 v27, v27")
A("v_add_f32 v26, 1.0, v26\nv_add_f32 v27, 1.0, v27\nv_rcp_f32 v26, v26\nv_rcp_f32 v27, v27\nv_mul_f32 v24, v24, v26\nv_mul_f32 v25, v25, v27")
A("v_cvt_pk_bf16_f32 v25, v24, v25\nv_lshlrev_b32 v24, 16, v25\nv_and_b32 v25, 0xffff0000, v25")
A("v_mul_f32 v24, v24, v28\nv_mul_f32 v25, v25, v29\nv_cvt_pk_bf16_f32 v24, v24, v25")
A("s_mov_b32 exec_hi, 0x00ffffff")
A(f"ds_write_b32 v10, v24 offset:{L_OV+4}")
lds_inc(L_FH, wait=False)
stamp(7)
A("L_fin4:")
finish()
A("L_Gred:")
A("s_cmp_ge_u32 s30, 14\ns_cbranch_scc1 L_idle")
A("s_lshr_b32 s45, s30, 1\ns_add_u32 s46, s45, 1\ns_cmp_eq_u32 s46, 7\ns_cselect_b32 s46, 0, s46")
A("s_lshl_b32 s47, s45, 11\ns_lshl_b32 s46, s46, 11\ns_add_u32 s46, s46, 1024")
A("v_mov_b32 v13, s47\nv_mov_b32 v5, s46\nv_cmp_le_u32 vcc, 32, v0\nv_cndmask_b32 v13, v13, v5, vcc\nv_add_u32 v13, v13, v12")
A("s_and_b32 s46, s29, 1\ns_lshl_b32 s46, s46, 1\ns_and_b32 s47, s30, 1\ns_add_u32 s46, s46, s47")
A(f"s_mul_i32 s58, s28, {7*2048}\ns_lshl_b32 s47, s46, 8\ns_add_u32 s58, s58, s47\ns_add_u32 s58, s58, {GP}")
A("v_and_b32 v1, 15, v0\nv_lshlrev_b32 v1, 16, v1\nv_bfe_u32 v5, v0, 4, 1\nv_mul_u32_u24 v5, 896, v5\nv_sub_u32 v1, v1, v5\nv_add_u32 v1, 896, v1")
A(f"s_lshl_b32 s59, s28, 12\ns_lshl_b32 s47, s45, 7\ns_add_u32 s59, s59, s47\ns_add_u32 s59, s59, s46\ns_add_u32 s59, s59, {HINT+8*4096+2048+128-896}")
A("s_mov_b32 s40, 0xc000" if P["hgtrig"] >= 0 else "s_cmp_eq_u32 s45, 6\ns_cselect_b32 s40, -1, 0xffff")
gate()
if P["eG"]:
    lds_wait(7, L_EG, 4, 5, sleep=1)
    A("s_mov_b32 exec_lo, s40\ns_mov_b32 exec_hi, 0")
    A(f"buffer_store_byte v{VT}, v1, s[36:39], s59 offen sc1")
    A("s_mov_b64 exec, -1")
lds_wait(7, L_CG, 1, 5, sleep=2)
lds_wait(7, L_CG, 4, 5, sleep=0, extra=[f"ds_read_b128 v[24:27], v14 offset:{L_REDG}", f"ds_read_b128 v[28:31], v14 offset:{L_REDG+256}"])
for k in range(4): A(f"v_add_f32 v{24+k}, v{24+k}, v{28+k}")
swapadd_n(24, 28, 4, 16)
if P["gmask"]:
    for k in range(4): A(f"v_add_u32 v{24+k}, 0x80, v{24+k}")
tag_insert(24, 4)
A("s_mov_b32 exec_lo, 0xffff\ns_mov_b32 exec_hi, 0xffff")
A("buffer_store_dwordx4 v[24:27], v13, s[36:39], s58 offen sc1")
if not P["eG"]:
    A("s_mov_b32 exec_lo, s40\ns_mov_b32 exec_hi, 0")
    A(f"buffer_store_byte v{VT}, v1, s[36:39], s59 offen sc1")
stamp(6)
A("L_fin5:")
finish()
A("L_H2:")
A("s_lshl_b32 s45, s28, 2\ns_lshr_b32 s46, s30, 2\ns_add_u32 s45, s45, s46")
A(f"s_lshl_b32 s58, s45, 14\ns_lshl_b32 s46, s44, 7\ns_add_u32 s58, s58, s46\ns_add_u32 s58, s58, {AP}")
A("s_add_u32 s40, s58, 4096\ns_add_u32 s41, s58, 8192\ns_add_u32 s42, s58, 12288")
A(f"s_lshl_b32 s47, s45, 9\ns_add_u32 s47, s47, {ML}")
A("v_lshlrev_b32 v8, 9, v2\nv_lshl_add_u32 v8, v3, 4, v8\nv_lshlrev_b32 v9, 4, v2")
A("s_lshl_b32 s46, s44, 6\nv_lshlrev_b32 v10, 1, v10\nv_lshl_add_u32 v10, v3, 3, v10\nv_add_u32 v10, s46, v10")
A("s_lshl_b32 s61, s44, 8")
if P["h2share"]: A("s_and_b32 s46, s28, 1\ns_lshl_b32 s46, s46, 12\ns_sub_u32 s61, s61, s46")
own_hint_base(None)
gate()
if P["h2trig"] >= 0:
    A("s_cmp_lt_u32 s30, 14\ns_cbranch_scc1 L_h2loc")
hint_wait([(62, 0), (62, 128)])
lds_inc(L_CQR, wait=False)
lds_wait(7, L_CQR, 4, 12, sleep=1)
if P["h2trig"] >= 0:
    A("s_branch L_h2go\nL_h2loc:")
    lds_wait(7, L_EQ, 4, 12, sleep=2)
    A("L_h2go:")
stamp(4)
gather_loop([f"buffer_load_dwordx4 v[{24+4*k}:{27+4*k}], v9, s[36:39], s47 offen offset:{128*k} sc1" for k in range(4)] +
            [f"buffer_load_dwordx4 v[{40+4*k}:{43+4*k}], v8, s[36:39], s{(58,40,41,42)[k]} offen sc1" for k in range(4)],
            [24, 28, 32, 36, 40, 44, 48, 52], 12, 13, 14)
A("v_max3_f32 v12, v24, v28, v32\nv_max_f32 v12, v12, v36")
A(f"v_max_f32_dpp v12, v12, v12 row_ror:8 {DPPM}")
swapadd(12, 13, 16, "v_max_f32"); swapadd(12, 13, 32, "v_max_f32")
A(f"s_mov_b32 s61, {LOG2E:#x}")
for k in range(4): A(f"v_sub_f32 v{24+4*k}, v{24+4*k}, v12")
for k in range(4): A(f"v_mul_f32 v{24+4*k}, s61, v{24+4*k}")
for k in range(4): A(f"v_exp_f32 v{24+4*k}, v{24+4*k}")
A("v_mul_f32 v56, v24, v25")
for e in range(4): A(f"v_mul_f32 v{57+e}, v24, v{40+e}")
for k in range(1, 4):
    A(f"v_fmac_f32 v56, v{24+4*k}, v{25+4*k}")
    for e in range(4): A(f"v_fmac_f32 v{57+e}, v{24+4*k}, v{40+4*k+e}")
for k in range(5): A(f"v_add_f32_dpp v{56+k}, v{56+k}, v{56+k} row_ror:8 {DPPM}")
A("v_mov_b32 v62, v56")
A("v_permlane16_swap_b32 v57, v58\nv_permlane16_swap_b32 v59, v60\nv_permlane16_swap_b32 v62, v56")
A("v_add_f32 v56, v56, v62\nv_add_f32 v57, v57, v58\nv_add_f32 v59, v59, v60\nv_mov_b32 v62, v56")
A("v_permlane32_swap_b32 v57, v59\nv_permlane32_swap_b32 v62, v56")
A("v_add_f32 v56, v56, v62\nv_rcp_f32 v56, v56\nv_add_f32 v57, v57, v59")
A("v_mul_f32 v57, v57, v56\nv_cvt_pk_bf16_f32 v57, v57, v57")
A(f"ds_write_b16 v10, v57 offset:{L_OV}")
lds_inc(L_CO, wait=False)
stamp(5)
finish()
A("L_H3:")
A("s_cmp_lt_u32 s29, 28\ns_cbranch_scc1 L_noep")
A("s_lshl_b32 s45, s28, 2\ns_add_u32 s45, s45, s29\ns_sub_u32 s45, s45, 28")
srd(40, 4, 2048)
A("s_lshl_b32 s46, s45, 6\nv_bfe_u32 v4, v0, 4, 1\nv_lshlrev_b32 v4, 2, v4\nv_lshl_add_u32 v4, v3, 3, v4\nbuffer_load_dword v8, v4, s[40:43], s46 offen")
A(f"s_lshl_b32 s59, s45, 13\ns_add_u32 s59, s59, {OP}\ns_add_u32 s58, s59, 4096\nv_lshlrev_b32 v14, 4, v0")
A("s_waitcnt vmcnt(0)")
srd(40, 22, 2048)
A("v_lshlrev_b32 v16, 16, v8\nv_and_b32 v17, 0xffff0000, v8")
lds_wait(7, L_CI, 4, 5, sleep=1)
if P["h3sleep"]: A(f"s_sleep {P['h3sleep']}")
if P["h3s"]:
    n = P["h3s"]
    A("s_add_u32 s62, s26, s59\ns_addc_u32 s63, s27, 0")
    A(f"s_mov_b32 s60, {P['spin']}\nL_h3s:")
    slots = [(i * 64) // n + (i % 3) for i in range(n)]
    for i, sl in enumerate(slots): A(f"s_load_dword s{64+i}, s[62:63], {128*sl} glc")
    A("s_waitcnt lgkmcnt(0)")
    for i in range(n):
        A(f"s_xor_b32 s{64+i}, s{64+i}, s31")
        if i: A(f"s_or_b32 s64, s64, s{64+i}")
    A("s_and_b32 s64, s64, 0xff\ns_cbranch_scc0 L_h3sd")
    A("s_sub_u32 s60, s60, 1\ns_cmp_lg_u32 s60, 0\ns_cbranch_scc1 L_h3s\nL_h3sd:")
gather_loop([f"buffer_load_dwordx4 v[{24+4*k}:{27+4*k}], v14, s[36:39], s{59-k//4} offen offset:{1024*(k%4)} sc1" for k in range(8)], [24+4*k for k in range(8)], 5, 6, 10)
stamp(6)
for h in (0, 16):
    for k in range(4): A(f"v_add_f32 v{24+h+k}, v{24+h+k}, v{28+h+k}\nv_add_f32 v{32+h+k}, v{32+h+k}, v{36+h+k}")
for k in range(4): A(f"v_add_f32 v{24+k}, v{24+k}, v{32+k}\nv_add_f32 v{28+k}, v{40+k}, v{48+k}")
for k in range(4): A(f"v_permlane32_swap_b32 v{24+k}, v{28+k}")
for k in range(4): A(f"v_add_f32 v{28+k}, v{24+k}, v{28+k}")
A("v_permlane16_swap_b32 v28, v30\nv_permlane16_swap_b32 v29, v31")
A("v_add_f32 v28, v28, v30\nv_add_f32 v29, v29, v31")
A(f"v_add_f32_dpp v28, v28, v28 row_ror:8 {DPPM}\nv_add_f32_dpp v29, v29, v29 row_ror:8 {DPPM}")
A("v_cvt_pk_bf16_f32 v28, v28, v29\nv_mov_b32 v30, v28")
A("v_permlane32_swap_b32 v28, v30")
A("v_lshlrev_b32 v32, 16, v28\nv_and_b32 v33, 0xffff0000, v28\nv_add_f32 v32, v32, v16\nv_add_f32 v33, v33, v17")
A("v_lshlrev_b32 v36, 16, v30\nv_cvt_pk_bf16_f32 v28, v32, v33\nv_and_b32 v37, 0xffff0000, v30")
A("v_lshlrev_b32 v32, 16, v28\nv_and_b32 v33, 0xffff0000, v28\nv_add_f32 v32, v32, v36\nv_add_f32 v33, v33, v37")
A("v_cvt_pk_bf16_f32 v28, v32, v33")
OSC = ""
A("s_mov_b64 exec, 0x00ff00ff\nbuffer_store_dword v28, v4, s[40:43], s46 offen")
stamp(7)
A("s_mov_b64 exec, 1")
A("s_cmp_lg_u32 s45, 0\ns_cbranch_scc1 L_noep")
A(f"s_mov_b32 s46, {EPB}\nbuffer_store_dword v{VT}, v7, s[36:39], 0 offen offset:{EPA}{OSC}\nbuffer_store_dword v{VT}, v7, s[36:39], s46 offen{OSC}")
if P["tfix"]:
    A(f"L_tf:\ns_memrealtime s[92:93]\ns_waitcnt lgkmcnt(0)\ns_sub_u32 s46, s92, s94\ns_cmp_lt_u32 s46, {P['tfix']}\ns_cbranch_scc1 L_tf")
A("L_noep:")
finish()
A("L_idle:")
A("s_barrier\ns_endpgm")
KR, VR, QF, S0 = 40, 72, 104, 24
A("L_A2:")
A("s_lshr_b32 s45, s28, 1\ns_and_b32 s46, s28, 1\ns_lshl_b32 s46, s46, 4\ns_add_u32 s46, s46, s30")
A(f"s_lshl_b32 s49, s44, 13\ns_add_u32 s49, s49, {L_K}")
A("v_lshrrev_b32 v4, 4, v0\nv_and_b32 v5, 15, v0\nv_xor_b32 v6, v5, v4\nv_lshlrev_b32 v6, 4, v6")
A("v_lshl_add_u32 v8, v5, 8, v6\nv_add_u32 v8, s49, v8")
A("v_xor_b32 v9, 64, v8\nv_xor_b32 v10, 128, v8\nv_xor_b32 v14, 192, v8")
A("s_lshl_b32 s48, s44, 2\nv_mov_b32 v22, s48")
A("v_lshrrev_b32 v16, 5, v0\ns_lshl_b32 s48, s44, 1\nv_add_u32 v16, s48, v16")
A("v_and_b32 v17, 31, v0\nv_mul_u32_u24 v18, 528, v16\nv_lshl_add_u32 v18, v17, 4, v18\nv_lshlrev_b32 v19, 4, v16")
A("v_lshlrev_b32 v20, 14, v16\nv_lshl_add_u32 v20, v17, 4, v20\nv_lshlrev_b32 v21, 9, v16")
A(f"s_lshl_b32 s48, s45, 8\ns_add_u32 s48, s48, s46\ns_lshl_b32 s58, s48, 9\ns_add_u32 s58, s58, {AP}\ns_lshl_b32 s59, s48, 4\ns_add_u32 s59, s59, {ML}")
A("v_lshlrev_b32 v1, 16, v5\nv_bfe_u32 v13, v0, 4, 1\nv_lshl_add_u32 v1, v13, 12, v1")
A(f"s_lshl_b32 s47, s45, 13\ns_lshr_b32 s48, s46, 2\ns_lshl_b32 s48, s48, 7\ns_add_u32 s47, s47, s48\ns_and_b32 s48, s46, 3\ns_add_u32 s47, s47, s48\ns_add_u32 s47, s47, {HINT}")
A(f"s_lshl_b32 s40, s45, 15\ns_lshl_b32 s48, s44, 13\ns_add_u32 s40, s40, s48\ns_add_u32 s40, s40, {QP}")
A("v_lshl_add_u32 v16, v4, 11, v12")
A("v_lshl_add_u32 v120, v4, 8, v12\nv_add_u32 v120, 7168, v120")
A("v_cmp_eq_u32 vcc, 3, v4\nv_cndmask_b32 v121, 0, 1.0, vcc")
A("v_lshrrev_b32 v17, 1, v4\nv_mul_u32_u24 v17, 272, v17\nv_lshl_add_u32 v17, v13, 7, v17\nv_lshl_add_u32 v17, v5, 3, v17\ns_mul_i32 s61, s44, 544\nv_add_u32 v17, s61, v17")
A("s_lshl_b32 s61, s44, 9")
own_hint_base(None)
A("v_lshrrev_b32 v12, 2, v0")
A("v_and_b32 v13, 7, v12\nv_lshlrev_b32 v13, 1, v13\nv_bfe_u32 v23, v0, 1, 1\nv_xor_b32 v13, v13, v23\nv_lshlrev_b32 v13, 4, v13")
A(f"v_lshl_add_u32 v13, v12, 8, v13\nv_and_b32 v23, 1, v0\nv_lshl_add_u32 v13, v23, 3, v13\ns_add_u32 s48, s49, {L_V-L_K}\nv_add_u32 v13, s48, v13")
A(f"s_mov_b32 s48, {SCALE:#x}\ns_mov_b32 s43, {LOG2E:#x}")
gate()
if P["h1trig"] >= 0:
    lds_wait(7, L_EQ, 4, 12, sleep=1)
else:
    lds_wait(7, L_CQ, 4, 12, sleep=2)
    hint_wait([(62, 128 * i) for i in range(4)], wide=0)
A("s_setprio 3")
stamp(4)
loads = [f"buffer_load_dwordx4 v[{QF}:{QF+3}], v120, s[36:39], s40 offen sc1"] + [f"buffer_load_dwordx4 v[{24+4*k}:{27+4*k}], v16, s[36:39], s40 offen offset:{256*k} sc1" for k in range(4)]
for x in loads: A(x)
lds_wait(22, L_CK, 1, 12, sleep=0)
for T in range(2):
    for t in range(4):
        r = KR + 16 * T + 4 * t
        A(f"ds_read_b128 v[{r}:{r+3}], v{(8,9,10,14)[t]} offset:{4096*T}")
A("v_mul_u32_u24 v10, 272, v3\nv_lshl_add_u32 v10, v4, 4, v10")
A("v_mul_u32_u24 v8, 528, v3\nv_lshl_add_u32 v8, v4, 4, v8\nv_add_u32 v8, s49, v8")
A("v_lshl_add_u32 v9, v3, 4, v22")
stamp(1)
gather_loop(loads, [QF, 24, 28, 32, 36], 4, 5, 6, issued=True)
for k in range(4): A(f"v_mov_b32 v{QF+4+k}, v{QF+k}")
for k in range(4): A(f"v_add_f32 v{24+k}, v{24+k}, v{28+k}")
for k in range(4): A(f"v_permlane16_swap_b32 v{QF+4+k}, v{QF+k}")
for k in range(4): A(f"v_add_f32 v{QF+k}, v{QF+k}, v{QF+4+k}")
for k in range(4): A(f"v_mov_b32 v{QF+4+k}, v{QF+k}")
for k in range(4): A(f"v_add_f32 v{32+k}, v{32+k}, v{36+k}")
for k in range(4): A(f"v_permlane32_swap_b32 v{QF+4+k}, v{QF+k}")
for k in range(4): A(f"v_add_f32 v{QF+k}, v{QF+k}, v{QF+4+k}")
for k in range(4): A(f"v_add_f32 v{24+k}, v{24+k}, v{32+k}")
for k in range(4): A(f"v_fmac_f32 v{24+k}, v121, v{QF+k}")
A("v_cvt_pk_bf16_f32 v24, v24, v25\nv_cvt_pk_bf16_f32 v25, v26, v27")
A(f"ds_write_b64 v17, v[24:25] offset:{L_Q}")
lds_inc(L_CQR, wait=False)
stamp(6)
lds_wait(22, L_CV, 1, 12, sleep=0)
for dt in range(8):
    r = VR + 4 * dt
    if dt: A(f"v_xor_b32 v12, {32*dt}, v13")
    va = 12 if dt else 13
    A(f"ds_read_b64_tr_b16 v[{r}:{r+1}], v{va}\nds_read_b64_tr_b16 v[{r+2}:{r+3}], v{va} offset:4096")
stamp(3)
lds_wait(7, L_CQR, 4, 12, sleep=0, extra=[f"ds_read_b128 v[{QF+4*t}:{QF+4*t+3}], v10 offset:{L_Q+64*t}" for t in range(4)])
stamp(2)
for t in range(4):
    for T in range(2):
        r = KR + 16 * T + 4 * t; d = S0 + 4 * T
        A(f"v_mfma_f32_16x16x32_bf16 v[{d}:{d+3}], v[{r}:{r+3}], v[{QF+4*t}:{QF+4*t+3}], {'0' if t == 0 else f'v[{d}:{d+3}]'}")
for k in range(0, 8, 2): A(f"v_cvt_pk_bf16_f32 v{S0+k+1}, v{S0+k}, v{S0+k+1}")
for k in range(0, 8, 2): A(f"v_lshlrev_b32 v{S0+k}, 16, v{S0+k+1}\nv_and_b32 v{S0+k+1}, 0xffff0000, v{S0+k+1}")
for k in range(8): A(f"v_mul_f32 v{S0+k}, s48, v{S0+k}")
for k in range(0, 8, 2): A(f"v_cvt_pk_bf16_f32 v{S0+k+1}, v{S0+k}, v{S0+k+1}")
for k in range(0, 8, 2): A(f"v_lshlrev_b32 v{S0+k}, 16, v{S0+k+1}\nv_and_b32 v{S0+k+1}, 0xffff0000, v{S0+k+1}")
A("v_max3_f32 v32, v24, v25, v26\nv_max3_f32 v33, v27, v28, v29\nv_max3_f32 v32, v32, v30, v31\nv_max_f32 v32, v32, v33")
swapadd(32, 33, 16, "v_max_f32"); swapadd(32, 33, 32, "v_max_f32")
for k in range(8): A(f"v_sub_f32 v{S0+k}, v{S0+k}, v32")
for k in range(8): A(f"v_mul_f32 v{S0+k}, s43, v{S0+k}")
for k in range(8): A(f"v_exp_f32 v{S0+k}, v{S0+k}")
for k in range(4): A(f"v_cvt_pk_bf16_f32 v{36+k}, v{S0+2*k}, v{S0+2*k+1}")
OD = 40
sums = [f"v_add_f32 v{S0+k}, v{S0+k}, v{S0+4+k}" for k in range(4)] + ["v_add_f32 v24, v24, v26", "v_add_f32 v25, v25, v27", "v_add_f32 v24, v24, v25", "v_mov_b32 v25, v24"]
for dt in range(8):
    A(f"v_mfma_f32_16x16x32_bf16 v[{OD+4*dt}:{OD+4*dt+3}], v[{VR+4*dt}:{VR+4*dt+3}], v[36:39], 0")
    A(sums[dt])
A("s_mov_b32 exec_lo, 0x00ff00ff\ns_mov_b32 exec_hi, 0x00ff00ff")
for dt in range(8): A(f"ds_write_b128 v8, v[{OD+4*dt}:{OD+4*dt+3}] offset:{64*dt}")
A("s_mov_b64 exec, -1")
A("v_permlane16_swap_b32 v25, v24\nv_add_f32 v24, v24, v25")
swapadd(24, 25, 32)
A(f"s_mov_b64 exec, 0xff\nds_write_b32 v9, v32 offset:{L_MX}\nds_write_b32 v9, v24 offset:{L_LX}")
lds_inc(L_CA2, wait=False)
stamp(7)
lds_wait(7, L_CA2, 4, 12, sleep=0, extra=[f"ds_read_b128 v[24:27], v19 offset:{L_MX}", f"ds_read_b128 v[28:31], v19 offset:{L_LX}"] +
         [f"ds_read_b128 v[{40+4*w}:{43+4*w}], v18 offset:{L_K+8192*w}" for w in range(4)])
A("v_max3_f32 v32, v24, v25, v26\nv_max_f32 v32, v32, v27")
for w in range(4): A(f"v_sub_f32 v{24+w}, v{24+w}, v32")
for w in range(4): A(f"v_mul_f32 v{24+w}, s43, v{24+w}")
for w in range(4): A(f"v_exp_f32 v{24+w}, v{24+w}")
for k in range(4): A(f"v_mul_f32 v{36+k}, v24, v{40+k}")
for w in range(1, 4):
    for k in range(4): A(f"v_fmac_f32 v{36+k}, v{24+w}, v{40+4*w+k}")
tag_insert(36, 4)
A("buffer_store_dwordx4 v[36:39], v20, s[36:39], s58 offen sc1")
A("v_mul_f32 v33, v24, v28")
for w in range(1, 4): A(f"v_fmac_f32 v33, v{24+w}, v{28+w}")
tag_insert(32, 4)
A("s_mov_b32 exec_lo, 1\ns_mov_b32 exec_hi, 1")
A("buffer_store_dwordx4 v[32:35], v21, s[36:39], s59 offen sc1")
A("s_cmp_lg_u32 s44, 3\ns_cbranch_scc1 L_A_nohint")
A(f"s_mov_b32 exec_lo, {'0xc000c000' if P['h2trig'] >= 0 else '0xffff' if P['h2share'] else '-1'}\ns_mov_b32 exec_hi, 0")
A(f"buffer_store_byte v{VT}, v1, s[36:39], s47 offen sc1")
A("L_A_nohint:")
stamp(5)
if P["stamps"]:
    A("L_stamps:")
    A("s_mov_b64 exec, 1\ns_waitcnt lgkmcnt(0)")
    srd(36, 26, WS_USED)
    A(f"s_lshl_b32 s46, s2, 4\ns_add_u32 s46, s46, s3\ns_lshl_b32 s46, s46, 5\ns_add_u32 s46, s46, {STAMP}")
    for i in range(8): A(f"v_mov_b32 v{24+i}, s{80+2*i}")
    A("buffer_store_dwordx4 v[24:27], v7, s[36:39], s46 offen\nbuffer_store_dwordx4 v[28:31], v7, s[36:39], s46 offen offset:16")
A("L_end:\ns_endpgm")
A("L_code_end:")
if P["nopub"]: A.L = [l for l in A.L if not (l.startswith("buffer_store_") and l.endswith("sc1"))]
if P["nogather"]: A.L = [l for l in A.L if not (l.startswith("buffer_load_dwordx4") and l.endswith("sc1"))]
if P["nopoll"]: A.L = [l for l in A.L if not (l.startswith("s_load_dword") and l.endswith("glc"))]
A.L = hazard.fix(A.L)
A.footer(124, 96)
A.L.insert(A.L.index(".end_amdhsa_kernel"), "  .amdhsa_float_denorm_mode_32 3")
A.write(OUT)
```

```python
import sys
from asmlib import *
import hazard

P = dict(stamps=0, pol="nt", D=5, DY=6, DF=5, B0=8, eQ=0, eG=0, eA=0, DQ=0, DFY=0, DGY=0, freeA=0, freeB=0, GX=22, h1trig=8, h3s=0, h3sleep=0, h2share=0, ypause=-1, qmask=1, gmask=1, h2trig=-1, hgtrig=-1, sdelay=0, tlb=0, osc=0, spin=400000, prefetch=8, hsleep=1, tfix=0, free=0,
         nopub=0, nogather=0, nopoll=0)
for a in sys.argv[2:]:
    k, v = a.split("=")
    assert k in P, k
    P[k] = v if k == "pol" else int(v)
OUT = sys.argv[1]
LSPIN = P["spin"] * 4
if P["free"]: P["spin"] = 1

EPA, ML, AP, GP, OP, HINT, QP, EPB, STAMP = 0x0, 0x1000, 0x15000, 0x95000, 0xB1000, 0x100000, 0x200000, 0x220000, 0x240000
WS_USED = 0x300000
L_FX, L_TAG, L_CQ, L_CG, L_CK, L_CV, L_CQR, L_CA2, L_CO, L_FH, L_CI, L_EQ, L_EG = 0, 4, 8, 12, 16, 32, 48, 52, 56, 60, 64, 68, 72
L_MX, L_LX = 0x100, 0x180
L_XN, L_OV = 0x400, 0xC00
L_REDQ, L_REDG, L_Q, L_K, L_V = 0xE00, 0x1600, 0x1E00, 0x3000, 0xB000
LDS_BYTES = 0x14400
DPPM = "row_mask:0xf bank_mask:0xf"
LOG2E = 0x3fb8aa3b
SCALE = 0x3db504f3

A = Asm()
A.header(256, 768, LDS_BYTES)
_uid = [0]
def lab(p):
    _uid[0] += 1
    return f"L_{p}_{_uid[0]}"
def stamp(i):
    if P["stamps"]: A(f"s_memrealtime s[{80+2*i}:{81+2*i}]")
def srd(d, base, size):
    A(f"s_mov_b32 s{d}, s{base}\ns_mov_b32 s{d+1}, s{base+1}\ns_mov_b32 s{d+2}, {size:#x}\ns_mov_b32 s{d+3}, 0x20000")
def lds_wait(vaddr, off, val, vt, sleep=1, extra=()):
    l = lab("lw"); e = lab("lwd")
    A(f"s_mov_b32 s60, {LSPIN}")
    A(f"{l}:\nds_read_b32 v{vt}, v{vaddr} offset:{off}")
    for x in extra: A(x)
    A(f"s_waitcnt lgkmcnt(0)\nv_readfirstlane_b32 s61, v{vt}")
    A(f"s_cmp_ge_u32 s61, {val}\ns_cbranch_scc1 {e}")
    if sleep: A(f"s_sleep {sleep}")
    A(f"s_sub_u32 s60, s60, 1\ns_cmp_lg_u32 s60, 0\ns_cbranch_scc1 {l}\n{e}:")
VT = 11
def hint_wait(loads, wide=None):
    l = lab("hw"); e = lab("hwd")
    A("s_and_b32 s56, s31, 0xff\ns_mul_i32 s56, s56, 0x01010101")
    A(f"s_mov_b32 s60, {P['spin']}")
    A(f"{l}:")
    regs = []
    if wide is not None:
        b, o = loads[-1]; loads = loads[:-1]
        A(f"s_load_dwordx2 s[68:69], s[{b}:{b+1}], {o} glc"); regs += [68, 69]
    for i, (b, o) in enumerate(loads):
        A(f"s_load_dword s{64+i}, s[{b}:{b+1}], {o} glc"); regs.append(64 + i)
    A("s_waitcnt lgkmcnt(0)")
    for i, r in enumerate(regs):
        A(f"s_xor_b32 s{r}, s{r}, s56")
        if i: A(f"s_or_b32 s{regs[0]}, s{regs[0]}, s{r}")
    A(f"s_cbranch_scc0 {e}")
    if P["hsleep"]: A(f"s_sleep {P['hsleep']}")
    A(f"s_sub_u32 s60, s60, 1\ns_cmp_lg_u32 s60, 0\ns_cbranch_scc1 {l}\n{e}:")
def tag_insert(vreg, n):
    for k in range(n): A(f"v_perm_b32 v{vreg+k}, v{vreg+k}, v{VT}, s{52+(k&3)}")
def tag_check(bases, vt0, vt1, vacc):
    first = True
    for b in bases:
        A(f"v_perm_b32 v{vt0}, v{b+1}, v{b}, s50\nv_perm_b32 v{vt1}, v{b+3}, v{b+2}, s51")
        if first:
            A(f"v_bitop3_b32 v{vacc}, v{vt0}, v{vt1}, v{VT} bitop3:0x56"); first = False
        else:
            A(f"v_bitop3_b32 v{vt0}, v{vt0}, v{vt1}, v{VT} bitop3:0x56\nv_or_b32 v{vacc}, v{vacc}, v{vt0}")
def gather_loop(loads, bases, vt0, vt1, vacc, sleep=0, issued=False):
    l = lab("gl"); e = lab("gld"); c = lab("glc")
    A(f"s_mov_b32 s60, {P['spin']}")
    if issued: A(f"s_branch {c}")
    A(f"{l}:")
    for x in loads: A(x)
    A(f"{c}:")
    n = len(bases)
    for i, b in enumerate(bases):
        A(f"s_waitcnt vmcnt({n-1-i})")
        for k in range(4): A(f"v_xor_b32 v{b+k}, s{74+k}, v{b+k}")
        if i == 0:
            A(f"v_or3_b32 v{vacc}, v{b}, v{b+1}, v{b+2}\nv_or_b32 v{vacc}, v{vacc}, v{b+3}")
        else:
            A(f"v_or3_b32 v{vacc}, v{vacc}, v{b}, v{b+1}\nv_or3_b32 v{vacc}, v{vacc}, v{b+2}, v{b+3}")
    A(f"v_and_b32 v{vacc}, 0xff, v{vacc}")
    A(f"v_cmp_ne_u32 vcc, 0, v{vacc}")
    A(f"s_and_b64 exec, exec, vcc\ns_cbranch_scc0 {e}")
    if sleep: A(f"s_sleep {sleep}")
    A(f"s_sub_u32 s60, s60, 1\ns_cmp_lg_u32 s60, 0\ns_cbranch_scc1 {l}\n{e}:")
    A("s_mov_b64 exec, -1")
def swapadd(v, t, which, op="v_add_f32"):
    A(f"v_mov_b32 v{t}, v{v}\nv_permlane{which}_swap_b32 v{t}, v{v}\n{op} v{v}, v{v}, v{t}")
def swapadd_n(v, t, n, which, op="v_add_f32"):
    for k in range(n): A(f"v_mov_b32 v{t+k}, v{v+k}")
    for k in range(n): A(f"v_permlane{which}_swap_b32 v{t+k}, v{v+k}")
    for k in range(n): A(f"{op} v{v+k}, v{v+k}, v{t+k}")
def allsum(v, t):
    for m in ("quad_perm:[1,0,3,2]", "quad_perm:[2,3,0,1]", "row_half_mirror", "row_mirror"):
        A(f"v_add_f32_dpp v{v}, v{v}, v{v} {m} {DPPM}")
    swapadd(v, t, 16); swapadd(v, t, 32)
def bf16r(v):
    A(f"v_cvt_pk_bf16_f32 v{v}, v{v}, v{v}\nv_lshlrev_b32 v{v}, 16, v{v}")
def lds_inc(off, wait=True, va=7):
    A("s_mov_b64 exec, 1" + ("\ns_waitcnt lgkmcnt(0)" if wait else "") + f"\nds_add_u32 v{va}, v15 offset:{off}\ns_mov_b64 exec, -1")
def finish():
    A("s_branch L_stamps" if P["stamps"] else "s_endpgm")
def common_regs():
    srd(36, 26, WS_USED)
    for k in range(4): A(f"s_mov_b32 s{52+k}, {0x07060500+k:#x}")
def tag_bytes():
    A("s_and_b32 s74, s31, 0xff\ns_bfe_u32 s75, s31, 0x80008\ns_bfe_u32 s76, s31, 0x80010\ns_lshr_b32 s77, s31, 24")
def get_tag():
    A(f"ds_read_b32 v{VT}, v7 offset:{L_TAG}\ns_waitcnt lgkmcnt(0)\nv_readfirstlane_b32 s31, v{VT}")
def gate():
    A("s_barrier"); get_tag(); tag_bytes()
def own_hint_base(extra=0):
    A(f"s_lshl_b32 s62, s2, 12\ns_add_u32 s62, s62, {HINT}")
    if extra is None: A("s_add_u32 s62, s62, s61")
    elif extra: A(f"s_add_u32 s62, s62, {extra}")
    A("s_add_u32 s62, s26, s62\ns_addc_u32 s63, s27, 0")
pol = P["pol"]
D = P["D"]; DF = P["DF"]
XPQ, XPG, SEL, OPB, ACC, QW, FW = 16, 20, 32, 40, 48, 52, 52
DY = P["DY"]; B0 = P["B0"]
def sync0():
    A("s_waitcnt lgkmcnt(0)\ns_barrier")
def build_op(dst, xp, t):
    for d in range(4):
        A(f"v_perm_b32 v{dst+d}, v{xp+(t>>1)}, v{xp+(t>>1)}, v{SEL+2*d+(t&1)}")
def mfma(op, w, first):
    A(f"v_mfma_f32_16x16x32_bf16 v[{ACC}:{ACC+3}], v[{op}:{op+3}], v[{w}:{w+3}], {'0' if first else f'v[{ACC}:{ACC+3}]'}")
def red_write(base, cnt):
    A("s_mov_b32 exec_lo, 0x00ff00ff\ns_mov_b32 exec_hi, 0xff00ff00")
    A(f"ds_write_b128 v1, v[{ACC}:{ACC+3}] offset:{base}")
    lds_inc(cnt, wait=False)

A("s_cmp_ge_u32 s2, 256\ns_cbranch_scc1 L_end")
A("s_load_dwordx16 s[4:19], s[0:1], 0\ns_load_dwordx8 s[20:27], s[0:1], 64")
A("v_lshrrev_b32 v1, 6, v0\nv_and_b32 v0, 63, v0\nv_readfirstlane_b32 s3, v1")
A("v_mov_b32 v7, 0\nv_mov_b32 v15, 1\ns_add_u32 s3, s3, 12\ns_and_b32 s3, s3, 15")
if P["stamps"]:
    for i in range(1, 8): A(f"s_mov_b32 s{80+2*i}, 0")
stamp(0)
if P["tfix"]: A("s_memrealtime s[94:95]")
A("s_and_b32 s28, s2, 7\ns_lshr_b32 s29, s2, 3\ns_lshr_b32 s30, s2, 4\ns_and_b32 s44, s3, 3")
A("v_lshrrev_b32 v2, 3, v0\nv_and_b32 v3, 7, v0\ns_mov_b32 s35, 0x20000\ns_mov_b32 s43, 0x20000")
A("s_cmp_lt_u32 s3, 4\ns_cbranch_scc1 L_S")
A("s_cmp_eq_u32 s3, 12\ns_cbranch_scc1 L_x")
A("s_cmp_lg_u32 s3, 13\ns_cbranch_scc1 L_other")
if P["prefetch"]:
    A("s_getpc_b64 s[40:41]\nL_pc:")
    if P["prefetch"] == 1:
        A(f"s_mov_b32 s42, L_code_end-L_pc\nv_lshlrev_b32 v4, 7, v0\ns_movk_i32 s46, 0x2000")
        A("buffer_load_dword v40, v4, s[40:43], 0 offen\nbuffer_load_dword v40, v4, s[40:43], s46 offen")
    else:
        n = P["prefetch"]
        A(f"s_mov_b32 s42, L_code_end-L_pc\nv_lshlrev_b32 v4, 7, v0\ns_lshl_b32 s46, s29, 9\ns_mov_b64 exec, {(1 << n) - 1}")
        A("buffer_load_dword v40, v4, s[40:43], s46 offen\ns_mov_b64 exec, -1")
A("s_branch L_other")
A("L_x:")
A("s_setprio 3")
A("v_lshlrev_b32 v5, 5, v0\ns_movk_i32 s42, 2048")
A("s_waitcnt lgkmcnt(0)\ns_mov_b32 s40, s4\ns_mov_b32 s41, s5")
A("buffer_load_dwordx4 v[16:19], v5, s[40:43], 0 offen\nbuffer_load_dwordx4 v[20:23], v5, s[40:43], 0 offen offset:16")
A("s_branch L_ln")
A("L_S:")
A("s_setprio 3")
A("s_and_b32 s45, s29, 3\ns_lshl_b32 s48, s45, 2\ns_add_u32 s48, s48, s44\ns_lshr_b32 s47, s29, 2")
A("s_lshr_b32 s46, s29, 4\ns_lshl_b32 s46, s46, 2\ns_add_u32 s45, s45, s46\ns_lshl_b32 s45, s45, 1\ns_and_b32 s46, s44, 1\ns_add_u32 s45, s45, s46")
A("s_lshl_b32 s46, s44, 1\ns_or_b32 s46, s46, 3\ns_and_b32 s49, s47, 3\ns_cmp_eq_u32 s49, 3\ns_cselect_b32 s48, s45, s48\ns_cselect_b32 s47, s46, s47")
A("s_lshl_b32 s48, s48, 6\ns_lshl_b32 s46, s28, 3\ns_add_u32 s47, s47, s46\ns_lshl_b32 s47, s47, 7")
A(f"s_lshl_b32 s46, s48, 13\ns_add_u32 s60, s47, s46\ns_mov_b32 s38, {8<<20:#x}\ns_mov_b32 s39, 0x20000")
A("v_lshlrev_b32 v4, 16, v2\nv_lshl_add_u32 v4, v3, 4, v4")
A("s_waitcnt lgkmcnt(0)")
A("s_mov_b32 s36, s10\ns_mov_b32 s37, s11")
def q_issue(t):
    def f():
        A(f"buffer_load_dwordx4 v[{QW+4*t}:{QW+4*t+3}], v4, s[36:39], s60 offen {pol}")
        if t < 7: A("s_add_u32 s60, s60, 0x2000")
    return f
if not P["sdelay"]:
    for t in range(B0): q_issue(t)()
    stamp(1)
A("s_lshr_b32 s46, s30, 1\ns_add_u32 s47, s46, 1\ns_cmp_eq_u32 s47, 7\ns_cselect_b32 s47, 0, s47")
A("s_cmp_ge_u32 s44, 2\ns_cselect_b32 s46, s47, s46\ns_cselect_b32 s32, s18, s16\ns_cselect_b32 s33, s19, s17")
A("s_mul_i32 s47, s28, 7\ns_add_u32 s46, s46, s47\ns_lshl_b32 s49, s46, 7")
A(f"s_cmp_ge_u32 s30, 14\ns_cselect_b32 s34, 0, {7<<20:#x}")
GX = P["GX"]; GY = 32 - GX
assert GX % 2 == 0 and GX <= 24
A("s_and_b32 s45, s30, 1\ns_lshl_b32 s45, s45, 1\ns_and_b32 s46, s44, 1\ns_add_u32 s45, s45, s46")
A("s_lshl_b32 s56, s28, 2\ns_lshr_b32 s46, s30, 2\ns_add_u32 s56, s56, s46")
A("s_and_b32 s46, s30, 3\ns_lshl_b32 s57, s46, 9\ns_lshl_b32 s46, s44, 7\ns_add_u32 s57, s57, s46")
if P["sdelay"]:
    for t in range(B0): q_issue(t)()
    stamp(1)
A("s_bitcmp1_b32 s29, 0\ns_cbranch_scc1 L_SY")

def post_burst(ng, D):
    A("v_and_b32 v16, 1, v3\nv_cmp_eq_u32 vcc, 1, v16")
    A("v_mov_b32 v16, 0x0c0c0100\nv_mov_b32 v17, 0x01000c0c\nv_cndmask_b32 v16, v16, v17, vcc")
    A("v_mov_b32 v17, 0x0c0c0302\nv_mov_b32 v18, 0x03020c0c\nv_cndmask_b32 v17, v17, v18, vcc")
    A("v_lshrrev_b32 v18, 1, v3\nv_mov_b32 v19, 0x0c0c0c0c")
    for d in range(4):
        A(f"v_cmp_eq_u32 vcc, {d}, v18")
        A(f"v_cndmask_b32 v{SEL+2*d}, v19, v16, vcc\nv_cndmask_b32 v{SEL+2*d+1}, v19, v17, vcc")
    A("v_bfe_u32 v16, v0, 4, 1\nv_lshl_add_u32 v16, v3, 1, v16\nv_lshrrev_b32 v1, 5, v0\nv_lshlrev_b32 v1, 8, v1\nv_lshl_add_u32 v1, v16, 4, v1")
    A("s_lshl_b32 s46, s44, 9\nv_add_u32 v1, s46, v1")
    A(f"s_lshl_b32 s48, s48, 1\ns_lshl_b32 s59, s59, 1\ns_add_u32 s59, s59, {L_XN}\nv_lshlrev_b32 v{OPB}, 4, v2\nv_mul_u32_u24 v{OPB+1}, {2*ng}, v2\nv_add_u32 v{OPB+1}, s59, v{OPB+1}\nv_add_u32 v{OPB}, s48, v{OPB}")
    A(f"v_mul_u32_u24 v5, {ng*7168}, v2\nv_lshl_add_u32 v5, v3, 4, v5")
    A("s_barrier")
    stamp(2)
    A(f"ds_read_b128 v[{XPQ}:{XPQ+3}], v{OPB} offset:{L_XN}")
    for g in range(0, ng // 2, 2): A(f"ds_read2_b32 v[{XPG+g}:{XPG+g+1}], v{OPB+1} offset0:{g} offset1:{g+1}")
    A("s_waitcnt lgkmcnt(0)")

def run_stream(seq, pre):
    n = len(seq); nextp = 0
    for k in range(pre, n):
        dd = seq[k][2]
        while nextp < k - dd:
            if seq[nextp][1]:
                A(f"s_waitcnt vmcnt({k-1-nextp})"); seq[nextp][1]()
            nextp += 1
        A(f"s_waitcnt vmcnt({dd-1})")
        seq[k][0]()
        while nextp <= k - dd:
            if seq[nextp][1]: seq[nextp][1]()
            nextp += 1
    while nextp < n:
        if seq[nextp][1]:
            A(f"s_waitcnt vmcnt({n-1-nextp})"); seq[nextp][1]()
        nextp += 1
def q_proc(t):
    def f():
        build_op(OPB + 4 * (t & 1), XPQ, t)
        mfma(OPB + 4 * (t & 1), QW + 4 * t, t == 0)
        if P["eQ"] and t == 7 - P["eQ"]: lds_inc(L_EQ, wait=False)
        if t == 7:
            red_write(L_REDQ, L_CQ); stamp(3)
    return f
def qseq(d): return [[q_issue(t), q_proc(t), P["DQ"] or d] for t in range(8)]

A(f"s_mul_i32 s59, s45, {8*GX}\ns_mul_i32 s47, s59, 7168\ns_add_u32 s47, s47, s49")
def gslot(g): return FW + 4 * (8 + g % 8)
def g_issue(g, n, slot):
    def f():
        A(f"buffer_load_dwordx4 v[{slot}:{slot+3}], v5, s[32:35], s47 offen {pol}")
        if g < n - 1: A("s_add_u32 s47, s47, 7168")
    return f
def g_proc(g, n, slot, first_extra=None):
    def f():
        if first_extra: first_extra()
        build_op(OPB + 4 * (g & 1), XPG, g)
        mfma(OPB + 4 * (g & 1), slot, g == 0)
        if P["eG"] and g == n - 1 - P["eG"]: lds_inc(L_EG, wait=False)
        if g == n - 1: g_done()
    return f
def f_issue(t, last):
    def f():
        A(f"buffer_load_dwordx4 v[{FW+4*t}:{FW+4*t+3}], v6, s[40:43], s58 offen offset:{2048*(t&1)} {pol}")
        if t & 1 and t < last: A("s_add_u32 s58, s58, 4096")
    return f
def g_done():
    red_write(L_REDG, L_CG); stamp(4)
def q_done():
    red_write(L_REDQ, L_CQ)
seq = [[g_issue(g, GX, gslot(g)), g_proc(g, GX, gslot(g)), D] for g in range(GX)]
seq += [[f_issue(t, 15), None, DF] for t in range(16)]
for t in range(D): seq[GX+t][2] = D
if P["h2trig"] >= 0: seq[GX+P["h2trig"]][1] = lambda: lds_inc(L_EQ, wait=False)
seq = qseq(D) + seq
A(f"s_mov_b32 s40, s12\ns_mov_b32 s41, s13\ns_mov_b32 s42, {8<<20:#x}\ns_lshl_b32 s58, s56, 18\ns_add_u32 s58, s58, s57")
A("v_lshlrev_b32 v6, 15, v2\nv_lshl_add_u32 v6, v3, 4, v6")
post_burst(GX, D)
run_stream(seq, B0)
A(f"s_mov_b32 s45, {L_CO}\ns_mov_b32 s46, {0 if P['freeA'] else 4}\ns_mov_b32 s49, 0")
A("s_branch L_F")
A("L_SY:")
A("s_lshr_b32 s47, s28, 1\ns_lshl_b32 s47, s47, 23\ns_and_b32 s46, s28, 1\ns_lshl_b32 s46, s46, 4\ns_add_u32 s46, s46, s30\ns_lshl_b32 s46, s46, 15\ns_add_u32 s47, s47, s46")
A(f"s_lshl_b32 s46, s44, 13\ns_add_u32 s58, s47, s46\ns_add_u32 s58, s58, {28672*256}\ns_add_u32 s61, s46, {L_K}")
A("v_lshrrev_b32 v16, 4, v0\nv_and_b32 v17, 15, v0")
A("v_xor_b32 v8, v17, v16\nv_lshlrev_b32 v8, 4, v8\nv_lshl_add_u32 v8, v16, 8, v8")
A("v_xor_b32 v9, 64, v8\nv_xor_b32 v10, 128, v8\nv_xor_b32 v14, 192, v8")
A("v_lshlrev_b32 v12, 1, v16\nv_xor_b32 v12, v17, v12\nv_lshlrev_b32 v12, 4, v12\nv_lshl_add_u32 v12, v16, 8, v12\nv_xor_b32 v13, 128, v12")
A(f"s_mov_b32 s40, s6\ns_mov_b32 s41, s7\ns_mov_b32 s42, {32<<20:#x}")
A(f"s_mul_i32 s59, s45, {8*GY}\ns_add_u32 s59, s59, {32*GX}\ns_mul_i32 s47, s59, 7168\ns_add_u32 s47, s47, s49")
A("s_lshl_b32 s46, s44, 2\nv_mov_b32 v11, s46")
def kv_issue(i):
    def f():
        mat, ii = i // 8, i % 8
        if i == 8: A("s_mov_b32 s40, s8\ns_mov_b32 s41, s9\ns_sub_u32 s58, s58, 8192")
        if ii % 4 == 0:
            A(f"s_add_u32 m0, s61, {(L_V - L_K) * mat + 4096 * (ii // 4)}")
            if i: A("s_add_u32 s58, s58, 4096")
        va = (8, 9, 10, 14)[ii & 3] if mat == 0 else (12 + (ii & 1))
        A(f"buffer_load_dwordx4 v{va}, s[40:43], s58 offen offset:{1024*(ii&3)} {pol} lds")
        if i == 15:
            A(f"s_mov_b32 s40, s20\ns_mov_b32 s41, s21\ns_mov_b32 s42, {7<<20:#x}\ns_mul_i32 s58, s56, {112*2048}\ns_add_u32 s58, s58, s57")
    return f
seq = [[kv_issue(i), None, DY] for i in range(16)]
seq[7][1] = lambda: lds_inc(L_CK, wait=False, va=11)
if P["h1trig"] >= 0:
    prev = seq[P["h1trig"]][1]
    def trig():
        if prev: prev()
        lds_inc(L_EQ, wait=False)
    seq[P["h1trig"]][1] = trig
def v_done():
    lds_inc(L_CV, wait=False, va=11); stamp(5)
seq[15][1] = v_done
DGY = P["DGY"] or D
seq += [[g_issue(g, GY, gslot(g)), g_proc(g, GY, gslot(g)), DGY] for g in range(GY)]
if P["ypause"] >= 0:
    k0 = 16 + P["ypause"]
    previ = seq[k0][0]
    def pz():
        v_done()
        lds_wait(7, L_CQR, 4, 4, sleep=1)
        previ()
    seq[k0][0] = pz
    seq[15][1] = None
    seq[k0][2] = 1 + P["ypause"]
DFY = P["DFY"] or DF
seq += [[f_issue(t, 15), None, DFY] for t in range(2, 16)]
for t in range(DGY): seq[16+GY+t][2] = DGY
if P["hgtrig"] >= 0: seq[16+GY+P["hgtrig"]][1] = lambda: lds_inc(L_EG, wait=False)
assert DGY <= 6
seq = qseq(DY) + seq
A(f"v_mul_u32_u24 v6, {14*2048}, v2\nv_lshl_add_u32 v6, v3, 4, v6")
post_burst(GY, DY)
run_stream(seq, B0)
A(f"s_mov_b32 s45, {L_FH}\ns_mov_b32 s46, {0 if P['freeB'] else 1}\ns_mov_b32 s49, 4096")
A("L_F:")
stamp(5) if False else None
A(f"s_lshl_b32 s58, s57, 7\ns_lshl_b32 s48, s56, 7\ns_add_u32 s58, s58, s48\ns_add_u32 s58, s58, s49\ns_add_u32 s58, s58, {OP}")
common_regs(); get_tag()
A("v_mov_b32 v6, s45\nv_lshlrev_b32 v5, 5, v2")
A("v_bfe_u32 v10, v0, 4, 1\nv_lshl_add_u32 v12, v3, 1, v10\nv_and_b32 v13, 7, v12\nv_lshlrev_b32 v13, 4, v13\nv_lshrrev_b32 v12, 3, v12\nv_lshl_add_u32 v13, v12, 13, v13")
for k in range(4): A(f"v_mov_b32 v{ACC+k}, 0")
stamp(6)
lds_wait(6, 0, "s46", 10, sleep=0, extra=[f"ds_read_b128 v[16:19], v5 offset:{L_OV}", f"ds_read_b128 v[20:23], v5 offset:{L_OV+16}"])
OB = [OPB, OPB + 4, 24, 28]
A("s_cmp_lg_u32 s49, 0\ns_cbranch_scc1 L_mm2")
build_op(OB[0], 16, 0); build_op(OB[1], 16, 1)
build_op(OB[2], 16, 2)
mfma(OB[0], FW, False)
build_op(OB[3], 16, 3)
mfma(OB[1], FW + 4, False)
A("s_branch L_mm3")
A("L_mm2:")
build_op(OB[2], 16, 2); build_op(OB[3], 16, 3)
A("L_mm3:")
for t in range(2, 16):
    if t + 2 < 16: build_op(OB[(t + 2) & 3], 16, t + 2)
    if 15 - t < max(DF, DFY): A(f"s_waitcnt vmcnt({15-t})")
    mfma(OB[t & 3], FW + 4 * t, False)
for k in range(4): A(f"v_mov_b32 v{24+k}, v{ACC+k}")
for k in range(4): A(f"v_permlane32_swap_b32 v{24+k}, v{ACC+k}")
for k in range(4): A(f"v_add_f32_dpp v{24+k}, v{ACC+k}, v{24+k} row_ror:8 {DPPM}")
tag_insert(24, 4)
A("s_mov_b64 exec, 0x00ff00ff")
A("buffer_store_dwordx4 v[24:27], v13, s[36:39], s58 offen sc1")
lds_inc(L_CI, wait=False)
stamp(7)
finish()
A("L_ln:")
A("s_setprio 3")
A(f"s_add_u32 s62, s26, {EPB}\ns_addc_u32 s63, s27, 0")
A(f"s_load_dword s31, s[26:27], {EPA}\ns_load_dword s57, s[62:63], 0")
A("s_waitcnt vmcnt(0)")
stamp(1)
for k in range(8): A(f"v_lshlrev_b32 v{24+2*k}, 16, v{16+k}\nv_and_b32 v{25+2*k}, 0xffff0000, v{16+k}")
for k in range(8): A(f"v_add_f32 v{40+k}, v{24+2*k}, v{25+2*k}")
for k in range(4): A(f"v_add_f32 v{40+k}, v{40+k}, v{44+k}")
A("v_add_f32 v40, v40, v42\nv_add_f32 v41, v41, v43\nv_add_f32 v6, v40, v41")
allsum(6, 13)
A("v_mul_f32 v6, 0x3a800000, v6")
for k in range(16): A(f"v_sub_f32 v{40+k}, v{24+k}, v6")
A("v_mul_f32 v10, v40, v40\nv_mul_f32 v12, v41, v41")
for k in range(2, 16): A(f"v_fmac_f32 v{10+2*(k&1)}, v{40+k}, v{40+k}")
A("v_add_f32 v10, v10, v12")
allsum(10, 13)
A("v_mul_f32 v10, 0x3a800000, v10")
bf16r(6); bf16r(10)
A("v_add_f32 v10, 0x3727c5ac, v10")
bf16r(10)
A("v_sqrt_f32 v10, v10")
for k in range(16): A(f"v_sub_f32 v{24+k}, v{24+k}, v6")
bf16r(10)
A("v_rcp_f32 v10, v10")
for k in range(8): A(f"v_cvt_pk_bf16_f32 v{16+k}, v{24+2*k}, v{25+2*k}")
for k in range(8):
    a, b = 24 + 2 * k, 25 + 2 * k
    A(f"v_lshlrev_b32 v{a}, 16, v{16+k}\nv_and_b32 v{b}, 0xffff0000, v{16+k}")
    A(f"v_mul_f32 v{a}, v{a}, v10\nv_mul_f32 v{b}, v{b}, v10")
    A(f"v_cvt_pk_bf16_f32 v{16+k}, v{a}, v{b}")
A(f"ds_write_b128 v5, v[16:19] offset:{L_XN}\nds_write_b128 v5, v[20:23] offset:{L_XN+16}")
A("s_waitcnt lgkmcnt(0)")
A("s_mul_i32 s31, s31, 0x9E3779B5\ns_mul_i32 s57, s57, 0x85EBCA6C\ns_add_u32 s31, s31, s57\ns_add_u32 s31, s31, 0x6A09E667")
A(f"v_mov_b32 v{VT}, s31\nds_write_b32 v7, v{VT} offset:{L_TAG}")
stamp(2)
A("s_waitcnt lgkmcnt(0)\ns_barrier")
common_regs(); tag_bytes()
A("s_branch L_H3")
A("L_other:")
A("s_setprio 2")
A("v_lshlrev_b32 v4, 2, v0\ns_mov_b64 exec, 0x7ffffffc\nds_write_b32 v4, v7\ns_mov_b64 exec, -1")
A("s_waitcnt lgkmcnt(0)")
common_regs()
A("v_and_b32 v12, 15, v0\nv_lshlrev_b32 v12, 4, v12\nv_lshrrev_b32 v10, 4, v0\nv_lshl_add_u32 v14, v10, 9, v12")
if P["tlb"]:
    A("s_cmp_lg_u32 s3, 14\ns_cbranch_scc1 L_notlb")
    sh = P["tlb"]
    n = (8 << 20) >> sh
    A(f"v_lshlrev_b32 v4, {sh}, v0\ns_mov_b64 exec, {(1 << min(n, 31)) - 1 if n < 32 else -1}")
    for i, (ptr, size, off) in enumerate(((16, 7 << 20, 0), (18, 7 << 20, 0), (12, 8 << 20, 0), (20, 7 << 20, 0), (26, WS_USED, 0))):
        srd(40, ptr, size)
        A(f"buffer_load_dword v{40+i}, v4, s[40:43], 0 offen")
    A(f"s_lshr_b32 s46, s28, 1\ns_lshl_b32 s46, s46, 23\ns_add_u32 s46, s46, {7<<20}\ns_mov_b64 exec, {(1 << max(1, (1 << 20) >> sh)) - 1}")
    for i, ptr in enumerate((6, 8)):
        srd(40, ptr, 32 << 20)
        A(f"buffer_load_dword v{46+i}, v4, s[40:43], s46 offen")
    A("s_mov_b64 exec, -1\nL_notlb:")
A("s_cmp_lt_u32 s3, 8\ns_cbranch_scc1 L_gath")
A("s_cmp_eq_u32 s3, 14\ns_cbranch_scc1 L_Gred")
A("s_cmp_eq_u32 s3, 15\ns_cbranch_scc1 L_HG")
A("s_lshr_b32 s47, s29, 2\ns_and_b32 s45, s29, 3\ns_lshr_b32 s46, s29, 4\ns_lshl_b32 s46, s46, 2\ns_add_u32 s46, s46, s45")
A("s_and_b32 s49, s47, 3\ns_cmp_eq_u32 s49, 3\ns_cselect_b32 s45, s46, s45\ns_cselect_b32 s47, 3, s47\ns_cselect_b32 s41, -1, 0\ns_cselect_b32 s40, 0xffff, 0")
A("s_lshl_b32 s46, s28, 3\ns_add_u32 s47, s47, s46")
A(f"s_lshl_b32 s58, s47, 11\ns_lshl_b32 s46, s45, 8\ns_add_u32 s58, s58, s46\ns_add_u32 s58, s58, {QP}")
A("v_lshrrev_b32 v5, 5, v0\nv_lshl_add_u32 v12, v5, 13, v12")
A("v_and_b32 v1, 15, v0\nv_lshlrev_b32 v1, 16, v1\nv_lshl_add_u32 v1, v5, 9, v1\nv_bfe_u32 v5, v0, 4, 1\nv_lshl_add_u32 v1, v5, 12, v1")
A(f"s_andn2_b32 s59, s28, 1\ns_lshl_b32 s59, s59, 12\ns_and_b32 s46, s47, 15\ns_lshl_b32 s46, s46, 7\ns_add_u32 s59, s59, s46\ns_add_u32 s59, s59, s45\ns_add_u32 s59, s59, {HINT+8*4096}")
gate()
lds_wait(7, L_CQ, 4, 13, sleep=0, extra=[f"ds_read_b128 v[24:27], v14 offset:{L_REDQ}", f"ds_read_b128 v[28:31], v14 offset:{L_REDQ+256}"])
for k in range(4): A(f"v_add_f32 v{24+k}, v{24+k}, v{28+k}")
swapadd_n(24, 28, 4, 16)
A("s_cmp_eq_u32 s49, 3\ns_cbranch_scc1 L_qsp")
swapadd_n(24, 28, 4, 32)
A("L_qsp:")
if P["qmask"]:
    for k in range(4): A(f"v_add_u32 v{24+k}, 0x80, v{24+k}")
tag_insert(24, 4)
A("s_mov_b32 exec_lo, 0xffff\ns_mov_b32 exec_hi, s40")
A("buffer_store_dwordx4 v[24:27], v12, s[36:39], s58 offen sc1")
if P["h1trig"] < 0:
    A("s_mov_b32 exec_lo, -1\ns_mov_b32 exec_hi, s41")
    A(f"buffer_store_byte v{VT}, v1, s[36:39], s59 offen sc1")
stamp(3)
finish()
A("L_gath:")
A("s_bitcmp1_b32 s29, 0\ns_cbranch_scc0 L_H2")
A("s_branch L_A2")
A("L_HG:")
A("s_bitcmp1_b32 s29, 0\ns_cbranch_scc0 L_idle")
A("s_lshr_b32 s45, s30, 2\ns_mul_i32 s46, s45, 112")
A("v_lshrrev_b32 v8, 1, v0\nv_min_u32 v8, 27, v8\nv_lshl_add_u32 v8, v8, 2, s46")
A("v_lshrrev_b32 v9, 6, v8\nv_and_b32 v8, 63, v8\nv_lshlrev_b32 v8, 2, v8\nv_lshl_add_u32 v8, v9, 11, v8\nv_and_b32 v9, 1, v0\nv_lshl_add_u32 v8, v9, 8, v8")
A(f"s_mul_i32 s58, s28, {7*2048}\ns_add_u32 s58, s58, {GP}")
A("v_mul_u32_u24 v10, 37, v0\nv_lshrrev_b32 v10, 8, v10\nv_add_u32 v10, v10, v0\nv_lshlrev_b32 v10, 2, v10")
A("s_lshl_b32 s61, s45, 1\ns_sub_u32 s61, s61, 1\ns_max_i32 s61, s61, 0\ns_min_u32 s61, s61, 4\ns_lshl_b32 s61, s61, 7\ns_add_u32 s61, s61, 2048")
own_hint_base(None)
gate()
if P["hgtrig"] >= 0: A("s_cmp_lt_u32 s30, 14\ns_cbranch_scc1 L_hgloc")
lds_wait(7, L_EG if P["eG"] else L_CG, 4, 13, sleep=2)
hint_wait([(62, 128 * i) for i in range(4)])
if P["hgtrig"] >= 0:
    A("s_branch L_hggo\nL_hgloc:")
    lds_wait(7, L_EG, 4, 13, sleep=2)
    A("L_hggo:")
stamp(6)
gather_loop([f"buffer_load_dwordx4 v[{24+4*k}:{27+4*k}], v8, s[36:39], s58 offen offset:{(0,1024,512,1536)[k]} sc1" for k in range(4)], [24, 28, 32, 36], 4, 5, 6)
for k in range(8): A(f"v_add_f32 v{24+k}, v{24+k}, v{32+k}")
for k in range(8): A(f"v_add_f32_dpp v{24+k}, v{24+k}, v{24+k} quad_perm:[1,0,3,2] {DPPM}")
A("v_cmp_eq_u32 vcc, 1, v9")
A("v_cndmask_b32 v24, v24, v26, vcc\nv_cndmask_b32 v25, v25, v27, vcc\nv_cndmask_b32 v28, v28, v30, vcc\nv_cndmask_b32 v29, v29, v31, vcc")
A("v_cvt_pk_bf16_f32 v25, v24, v25\nv_cvt_pk_bf16_f32 v29, v28, v29")
A("v_lshlrev_b32 v24, 16, v25\nv_and_b32 v25, 0xffff0000, v25\nv_lshlrev_b32 v28, 16, v29\nv_and_b32 v29, 0xffff0000, v29")
A(f"v_mul_f32 v26, {(LOG2E ^ 0x80000000):#x}, v24\nv_mul_f32 v27, {(LOG2E ^ 0x80000000):#x}, v25\nv_exp_f32 v26, v26\nv_exp_f32 v27, v27")
A("v_add_f32 v26, 1.0, v26\nv_add_f32 v27, 1.0, v27\nv_rcp_f32 v26, v26\nv_rcp_f32 v27, v27\nv_mul_f32 v24, v24, v26\nv_mul_f32 v25, v25, v27")
A("v_cvt_pk_bf16_f32 v25, v24, v25\nv_lshlrev_b32 v24, 16, v25\nv_and_b32 v25, 0xffff0000, v25")
A("v_mul_f32 v24, v24, v28\nv_mul_f32 v25, v25, v29\nv_cvt_pk_bf16_f32 v24, v24, v25")
A("s_mov_b32 exec_hi, 0x00ffffff")
A(f"ds_write_b32 v10, v24 offset:{L_OV+4}")
lds_inc(L_FH, wait=False)
stamp(7)
A("L_fin4:")
finish()
A("L_Gred:")
A("s_cmp_ge_u32 s30, 14\ns_cbranch_scc1 L_idle")
A("s_lshr_b32 s45, s30, 1\ns_add_u32 s46, s45, 1\ns_cmp_eq_u32 s46, 7\ns_cselect_b32 s46, 0, s46")
A("s_lshl_b32 s47, s45, 11\ns_lshl_b32 s46, s46, 11\ns_add_u32 s46, s46, 1024")
A("v_mov_b32 v13, s47\nv_mov_b32 v5, s46\nv_cmp_le_u32 vcc, 32, v0\nv_cndmask_b32 v13, v13, v5, vcc\nv_add_u32 v13, v13, v12")
A("s_and_b32 s46, s29, 1\ns_lshl_b32 s46, s46, 1\ns_and_b32 s47, s30, 1\ns_add_u32 s46, s46, s47")
A(f"s_mul_i32 s58, s28, {7*2048}\ns_lshl_b32 s47, s46, 8\ns_add_u32 s58, s58, s47\ns_add_u32 s58, s58, {GP}")
A("v_and_b32 v1, 15, v0\nv_lshlrev_b32 v1, 16, v1\nv_bfe_u32 v5, v0, 4, 1\nv_mul_u32_u24 v5, 896, v5\nv_sub_u32 v1, v1, v5\nv_add_u32 v1, 896, v1")
A(f"s_lshl_b32 s59, s28, 12\ns_lshl_b32 s47, s45, 7\ns_add_u32 s59, s59, s47\ns_add_u32 s59, s59, s46\ns_add_u32 s59, s59, {HINT+8*4096+2048+128-896}")
A("s_mov_b32 s40, 0xc000" if P["hgtrig"] >= 0 else "s_cmp_eq_u32 s45, 6\ns_cselect_b32 s40, -1, 0xffff")
gate()
if P["eG"]:
    lds_wait(7, L_EG, 4, 5, sleep=1)
    A("s_mov_b32 exec_lo, s40\ns_mov_b32 exec_hi, 0")
    A(f"buffer_store_byte v{VT}, v1, s[36:39], s59 offen sc1")
    A("s_mov_b64 exec, -1")
lds_wait(7, L_CG, 1, 5, sleep=2)
lds_wait(7, L_CG, 4, 5, sleep=0, extra=[f"ds_read_b128 v[24:27], v14 offset:{L_REDG}", f"ds_read_b128 v[28:31], v14 offset:{L_REDG+256}"])
for k in range(4): A(f"v_add_f32 v{24+k}, v{24+k}, v{28+k}")
swapadd_n(24, 28, 4, 16)
if P["gmask"]:
    for k in range(4): A(f"v_add_u32 v{24+k}, 0x80, v{24+k}")
tag_insert(24, 4)
A("s_mov_b32 exec_lo, 0xffff\ns_mov_b32 exec_hi, 0xffff")
A("buffer_store_dwordx4 v[24:27], v13, s[36:39], s58 offen sc1")
if not P["eG"]:
    A("s_mov_b32 exec_lo, s40\ns_mov_b32 exec_hi, 0")
    A(f"buffer_store_byte v{VT}, v1, s[36:39], s59 offen sc1")
stamp(6)
A("L_fin5:")
finish()
A("L_H2:")
A("s_lshl_b32 s45, s28, 2\ns_lshr_b32 s46, s30, 2\ns_add_u32 s45, s45, s46")
A(f"s_lshl_b32 s58, s45, 14\ns_lshl_b32 s46, s44, 7\ns_add_u32 s58, s58, s46\ns_add_u32 s58, s58, {AP}")
A("s_add_u32 s40, s58, 4096\ns_add_u32 s41, s58, 8192\ns_add_u32 s42, s58, 12288")
A(f"s_lshl_b32 s47, s45, 9\ns_add_u32 s47, s47, {ML}")
A("v_lshlrev_b32 v8, 9, v2\nv_lshl_add_u32 v8, v3, 4, v8\nv_lshlrev_b32 v9, 4, v2")
A("s_lshl_b32 s46, s44, 6\nv_lshlrev_b32 v10, 1, v10\nv_lshl_add_u32 v10, v3, 3, v10\nv_add_u32 v10, s46, v10")
A("s_lshl_b32 s61, s44, 8")
if P["h2share"]: A("s_and_b32 s46, s28, 1\ns_lshl_b32 s46, s46, 12\ns_sub_u32 s61, s61, s46")
own_hint_base(None)
gate()
if P["h2trig"] >= 0:
    A("s_cmp_lt_u32 s30, 14\ns_cbranch_scc1 L_h2loc")
hint_wait([(62, 0), (62, 128)])
lds_inc(L_CQR, wait=False)
lds_wait(7, L_CQR, 4, 12, sleep=1)
if P["h2trig"] >= 0:
    A("s_branch L_h2go\nL_h2loc:")
    lds_wait(7, L_EQ, 4, 12, sleep=2)
    A("L_h2go:")
stamp(4)
gather_loop([f"buffer_load_dwordx4 v[{24+4*k}:{27+4*k}], v9, s[36:39], s47 offen offset:{128*k} sc1" for k in range(4)] +
            [f"buffer_load_dwordx4 v[{40+4*k}:{43+4*k}], v8, s[36:39], s{(58,40,41,42)[k]} offen sc1" for k in range(4)],
            [24, 28, 32, 36, 40, 44, 48, 52], 12, 13, 14)
A("v_max3_f32 v12, v24, v28, v32\nv_max_f32 v12, v12, v36")
A(f"v_max_f32_dpp v12, v12, v12 row_ror:8 {DPPM}")
swapadd(12, 13, 16, "v_max_f32"); swapadd(12, 13, 32, "v_max_f32")
A(f"s_mov_b32 s61, {LOG2E:#x}")
for k in range(4): A(f"v_sub_f32 v{24+4*k}, v{24+4*k}, v12")
for k in range(4): A(f"v_mul_f32 v{24+4*k}, s61, v{24+4*k}")
for k in range(4): A(f"v_exp_f32 v{24+4*k}, v{24+4*k}")
A("v_mul_f32 v56, v24, v25")
for e in range(4): A(f"v_mul_f32 v{57+e}, v24, v{40+e}")
for k in range(1, 4):
    A(f"v_fmac_f32 v56, v{24+4*k}, v{25+4*k}")
    for e in range(4): A(f"v_fmac_f32 v{57+e}, v{24+4*k}, v{40+4*k+e}")
for k in range(5): A(f"v_add_f32_dpp v{56+k}, v{56+k}, v{56+k} row_ror:8 {DPPM}")
A("v_mov_b32 v62, v56")
A("v_permlane16_swap_b32 v57, v58\nv_permlane16_swap_b32 v59, v60\nv_permlane16_swap_b32 v62, v56")
A("v_add_f32 v56, v56, v62\nv_add_f32 v57, v57, v58\nv_add_f32 v59, v59, v60\nv_mov_b32 v62, v56")
A("v_permlane32_swap_b32 v57, v59\nv_permlane32_swap_b32 v62, v56")
A("v_add_f32 v56, v56, v62\nv_rcp_f32 v56, v56\nv_add_f32 v57, v57, v59")
A("v_mul_f32 v57, v57, v56\nv_cvt_pk_bf16_f32 v57, v57, v57")
A(f"ds_write_b16 v10, v57 offset:{L_OV}")
lds_inc(L_CO, wait=False)
stamp(5)
finish()
A("L_H3:")
A("s_cmp_lt_u32 s29, 28\ns_cbranch_scc1 L_noep")
A("s_lshl_b32 s45, s28, 2\ns_add_u32 s45, s45, s29\ns_sub_u32 s45, s45, 28")
srd(40, 4, 2048)
A("s_lshl_b32 s46, s45, 6\nv_bfe_u32 v4, v0, 4, 1\nv_lshlrev_b32 v4, 2, v4\nv_lshl_add_u32 v4, v3, 3, v4\nbuffer_load_dword v8, v4, s[40:43], s46 offen")
A(f"s_lshl_b32 s59, s45, 13\ns_add_u32 s59, s59, {OP}\ns_add_u32 s58, s59, 4096\nv_lshlrev_b32 v14, 4, v0")
A("s_waitcnt vmcnt(0)")
srd(40, 22, 2048)
A("v_lshlrev_b32 v16, 16, v8\nv_and_b32 v17, 0xffff0000, v8")
lds_wait(7, L_CI, 4, 5, sleep=1)
if P["h3sleep"]: A(f"s_sleep {P['h3sleep']}")
if P["h3s"]:
    n = P["h3s"]
    A("s_add_u32 s62, s26, s59\ns_addc_u32 s63, s27, 0")
    A(f"s_mov_b32 s60, {P['spin']}\nL_h3s:")
    slots = [(i * 64) // n + (i % 3) for i in range(n)]
    for i, sl in enumerate(slots): A(f"s_load_dword s{64+i}, s[62:63], {128*sl} glc")
    A("s_waitcnt lgkmcnt(0)")
    for i in range(n):
        A(f"s_xor_b32 s{64+i}, s{64+i}, s31")
        if i: A(f"s_or_b32 s64, s64, s{64+i}")
    A("s_and_b32 s64, s64, 0xff\ns_cbranch_scc0 L_h3sd")
    A("s_sub_u32 s60, s60, 1\ns_cmp_lg_u32 s60, 0\ns_cbranch_scc1 L_h3s\nL_h3sd:")
gather_loop([f"buffer_load_dwordx4 v[{24+4*k}:{27+4*k}], v14, s[36:39], s{59-k//4} offen offset:{1024*(k%4)} sc1" for k in range(8)], [24+4*k for k in range(8)], 5, 6, 10)
stamp(6)
for h in (0, 16):
    for k in range(4): A(f"v_add_f32 v{24+h+k}, v{24+h+k}, v{28+h+k}\nv_add_f32 v{32+h+k}, v{32+h+k}, v{36+h+k}")
for k in range(4): A(f"v_add_f32 v{24+k}, v{24+k}, v{32+k}\nv_add_f32 v{28+k}, v{40+k}, v{48+k}")
for k in range(4): A(f"v_permlane32_swap_b32 v{24+k}, v{28+k}")
for k in range(4): A(f"v_add_f32 v{28+k}, v{24+k}, v{28+k}")
A("v_permlane16_swap_b32 v28, v30\nv_permlane16_swap_b32 v29, v31")
A("v_add_f32 v28, v28, v30\nv_add_f32 v29, v29, v31")
A(f"v_add_f32_dpp v28, v28, v28 row_ror:8 {DPPM}\nv_add_f32_dpp v29, v29, v29 row_ror:8 {DPPM}")
A("v_cvt_pk_bf16_f32 v28, v28, v29\nv_mov_b32 v30, v28")
A("v_permlane32_swap_b32 v28, v30")
A("v_lshlrev_b32 v32, 16, v28\nv_and_b32 v33, 0xffff0000, v28\nv_add_f32 v32, v32, v16\nv_add_f32 v33, v33, v17")
A("v_lshlrev_b32 v36, 16, v30\nv_cvt_pk_bf16_f32 v28, v32, v33\nv_and_b32 v37, 0xffff0000, v30")
A("v_lshlrev_b32 v32, 16, v28\nv_and_b32 v33, 0xffff0000, v28\nv_add_f32 v32, v32, v36\nv_add_f32 v33, v33, v37")
A("v_cvt_pk_bf16_f32 v28, v32, v33")
OSC = ""
A("s_mov_b64 exec, 0x00ff00ff\nbuffer_store_dword v28, v4, s[40:43], s46 offen")
stamp(7)
A("s_mov_b64 exec, 1")
A("s_cmp_lg_u32 s45, 0\ns_cbranch_scc1 L_noep")
A(f"s_mov_b32 s46, {EPB}\nbuffer_store_dword v{VT}, v7, s[36:39], 0 offen offset:{EPA}{OSC}\nbuffer_store_dword v{VT}, v7, s[36:39], s46 offen{OSC}")
if P["tfix"]:
    A(f"L_tf:\ns_memrealtime s[92:93]\ns_waitcnt lgkmcnt(0)\ns_sub_u32 s46, s92, s94\ns_cmp_lt_u32 s46, {P['tfix']}\ns_cbranch_scc1 L_tf")
A("L_noep:")
finish()
A("L_idle:")
A("s_barrier\ns_endpgm")
KR, VR, QF, S0 = 40, 72, 104, 24
A("L_A2:")
A("s_lshr_b32 s45, s28, 1\ns_and_b32 s46, s28, 1\ns_lshl_b32 s46, s46, 4\ns_add_u32 s46, s46, s30")
A(f"s_lshl_b32 s49, s44, 13\ns_add_u32 s49, s49, {L_K}")
A("v_lshrrev_b32 v4, 4, v0\nv_and_b32 v5, 15, v0\nv_xor_b32 v6, v5, v4\nv_lshlrev_b32 v6, 4, v6")
A("v_lshl_add_u32 v8, v5, 8, v6\nv_add_u32 v8, s49, v8")
A("v_xor_b32 v9, 64, v8\nv_xor_b32 v10, 128, v8\nv_xor_b32 v14, 192, v8")
A("s_lshl_b32 s48, s44, 2\nv_mov_b32 v22, s48")
A("v_lshrrev_b32 v16, 5, v0\ns_lshl_b32 s48, s44, 1\nv_add_u32 v16, s48, v16")
A("v_and_b32 v17, 31, v0\nv_mul_u32_u24 v18, 528, v16\nv_lshl_add_u32 v18, v17, 4, v18\nv_lshlrev_b32 v19, 4, v16")
A("v_lshlrev_b32 v20, 14, v16\nv_lshl_add_u32 v20, v17, 4, v20\nv_lshlrev_b32 v21, 9, v16")
A(f"s_lshl_b32 s48, s45, 8\ns_add_u32 s48, s48, s46\ns_lshl_b32 s58, s48, 9\ns_add_u32 s58, s58, {AP}\ns_lshl_b32 s59, s48, 4\ns_add_u32 s59, s59, {ML}")
A("v_lshlrev_b32 v1, 16, v5\nv_bfe_u32 v13, v0, 4, 1\nv_lshl_add_u32 v1, v13, 12, v1")
A(f"s_lshl_b32 s47, s45, 13\ns_lshr_b32 s48, s46, 2\ns_lshl_b32 s48, s48, 7\ns_add_u32 s47, s47, s48\ns_and_b32 s48, s46, 3\ns_add_u32 s47, s47, s48\ns_add_u32 s47, s47, {HINT}")
A(f"s_lshl_b32 s40, s45, 15\ns_lshl_b32 s48, s44, 13\ns_add_u32 s40, s40, s48\ns_add_u32 s40, s40, {QP}")
A("v_lshl_add_u32 v16, v4, 11, v12")
A("v_lshl_add_u32 v120, v4, 8, v12\nv_add_u32 v120, 7168, v120")
A("v_cmp_eq_u32 vcc, 3, v4\nv_cndmask_b32 v121, 0, 1.0, vcc")
A("v_lshrrev_b32 v17, 1, v4\nv_mul_u32_u24 v17, 272, v17\nv_lshl_add_u32 v17, v13, 7, v17\nv_lshl_add_u32 v17, v5, 3, v17\ns_mul_i32 s61, s44, 544\nv_add_u32 v17, s61, v17")
A("s_lshl_b32 s61, s44, 9")
own_hint_base(None)
A("v_lshrrev_b32 v12, 2, v0")
A("v_and_b32 v13, 7, v12\nv_lshlrev_b32 v13, 1, v13\nv_bfe_u32 v23, v0, 1, 1\nv_xor_b32 v13, v13, v23\nv_lshlrev_b32 v13, 4, v13")
A(f"v_lshl_add_u32 v13, v12, 8, v13\nv_and_b32 v23, 1, v0\nv_lshl_add_u32 v13, v23, 3, v13\ns_add_u32 s48, s49, {L_V-L_K}\nv_add_u32 v13, s48, v13")
A(f"s_mov_b32 s48, {SCALE:#x}\ns_mov_b32 s43, {LOG2E:#x}")
gate()
if P["h1trig"] >= 0:
    lds_wait(7, L_EQ, 4, 12, sleep=1)
else:
    lds_wait(7, L_CQ, 4, 12, sleep=2)
    hint_wait([(62, 128 * i) for i in range(4)], wide=0)
A("s_setprio 3")
stamp(4)
loads = [f"buffer_load_dwordx4 v[{QF}:{QF+3}], v120, s[36:39], s40 offen sc1"] + [f"buffer_load_dwordx4 v[{24+4*k}:{27+4*k}], v16, s[36:39], s40 offen offset:{256*k} sc1" for k in range(4)]
for x in loads: A(x)
lds_wait(22, L_CK, 1, 12, sleep=0)
for T in range(2):
    for t in range(4):
        r = KR + 16 * T + 4 * t
        A(f"ds_read_b128 v[{r}:{r+3}], v{(8,9,10,14)[t]} offset:{4096*T}")
A("v_mul_u32_u24 v10, 272, v3\nv_lshl_add_u32 v10, v4, 4, v10")
A("v_mul_u32_u24 v8, 528, v3\nv_lshl_add_u32 v8, v4, 4, v8\nv_add_u32 v8, s49, v8")
A("v_lshl_add_u32 v9, v3, 4, v22")
stamp(1)
gather_loop(loads, [QF, 24, 28, 32, 36], 4, 5, 6, issued=True)
for k in range(4): A(f"v_mov_b32 v{QF+4+k}, v{QF+k}")
for k in range(4): A(f"v_add_f32 v{24+k}, v{24+k}, v{28+k}")
for k in range(4): A(f"v_permlane16_swap_b32 v{QF+4+k}, v{QF+k}")
for k in range(4): A(f"v_add_f32 v{QF+k}, v{QF+k}, v{QF+4+k}")
for k in range(4): A(f"v_mov_b32 v{QF+4+k}, v{QF+k}")
for k in range(4): A(f"v_add_f32 v{32+k}, v{32+k}, v{36+k}")
for k in range(4): A(f"v_permlane32_swap_b32 v{QF+4+k}, v{QF+k}")
for k in range(4): A(f"v_add_f32 v{QF+k}, v{QF+k}, v{QF+4+k}")
for k in range(4): A(f"v_add_f32 v{24+k}, v{24+k}, v{32+k}")
for k in range(4): A(f"v_fmac_f32 v{24+k}, v121, v{QF+k}")
A("v_cvt_pk_bf16_f32 v24, v24, v25\nv_cvt_pk_bf16_f32 v25, v26, v27")
A(f"ds_write_b64 v17, v[24:25] offset:{L_Q}")
lds_inc(L_CQR, wait=False)
stamp(6)
lds_wait(22, L_CV, 1, 12, sleep=0)
for dt in range(8):
    r = VR + 4 * dt
    if dt: A(f"v_xor_b32 v12, {32*dt}, v13")
    va = 12 if dt else 13
    A(f"ds_read_b64_tr_b16 v[{r}:{r+1}], v{va}\nds_read_b64_tr_b16 v[{r+2}:{r+3}], v{va} offset:4096")
stamp(3)
lds_wait(7, L_CQR, 4, 12, sleep=0, extra=[f"ds_read_b128 v[{QF+4*t}:{QF+4*t+3}], v10 offset:{L_Q+64*t}" for t in range(4)])
stamp(2)
for t in range(4):
    for T in range(2):
        r = KR + 16 * T + 4 * t; d = S0 + 4 * T
        A(f"v_mfma_f32_16x16x32_bf16 v[{d}:{d+3}], v[{r}:{r+3}], v[{QF+4*t}:{QF+4*t+3}], {'0' if t == 0 else f'v[{d}:{d+3}]'}")
for k in range(0, 8, 2): A(f"v_cvt_pk_bf16_f32 v{S0+k+1}, v{S0+k}, v{S0+k+1}")
for k in range(0, 8, 2): A(f"v_lshlrev_b32 v{S0+k}, 16, v{S0+k+1}\nv_and_b32 v{S0+k+1}, 0xffff0000, v{S0+k+1}")
for k in range(8): A(f"v_mul_f32 v{S0+k}, s48, v{S0+k}")
for k in range(0, 8, 2): A(f"v_cvt_pk_bf16_f32 v{S0+k+1}, v{S0+k}, v{S0+k+1}")
for k in range(0, 8, 2): A(f"v_lshlrev_b32 v{S0+k}, 16, v{S0+k+1}\nv_and_b32 v{S0+k+1}, 0xffff0000, v{S0+k+1}")
A("v_max3_f32 v32, v24, v25, v26\nv_max3_f32 v33, v27, v28, v29\nv_max3_f32 v32, v32, v30, v31\nv_max_f32 v32, v32, v33")
swapadd(32, 33, 16, "v_max_f32"); swapadd(32, 33, 32, "v_max_f32")
for k in range(8): A(f"v_sub_f32 v{S0+k}, v{S0+k}, v32")
for k in range(8): A(f"v_mul_f32 v{S0+k}, s43, v{S0+k}")
for k in range(8): A(f"v_exp_f32 v{S0+k}, v{S0+k}")
for k in range(4): A(f"v_cvt_pk_bf16_f32 v{36+k}, v{S0+2*k}, v{S0+2*k+1}")
OD = 40
sums = [f"v_add_f32 v{S0+k}, v{S0+k}, v{S0+4+k}" for k in range(4)] + ["v_add_f32 v24, v24, v26", "v_add_f32 v25, v25, v27", "v_add_f32 v24, v24, v25", "v_mov_b32 v25, v24"]
for dt in range(8):
    A(f"v_mfma_f32_16x16x32_bf16 v[{OD+4*dt}:{OD+4*dt+3}], v[{VR+4*dt}:{VR+4*dt+3}], v[36:39], 0")
    A(sums[dt])
A("s_mov_b32 exec_lo, 0x00ff00ff\ns_mov_b32 exec_hi, 0x00ff00ff")
for dt in range(8): A(f"ds_write_b128 v8, v[{OD+4*dt}:{OD+4*dt+3}] offset:{64*dt}")
A("s_mov_b64 exec, -1")
A("v_permlane16_swap_b32 v25, v24\nv_add_f32 v24, v24, v25")
swapadd(24, 25, 32)
A(f"s_mov_b64 exec, 0xff\nds_write_b32 v9, v32 offset:{L_MX}\nds_write_b32 v9, v24 offset:{L_LX}")
lds_inc(L_CA2, wait=False)
stamp(7)
lds_wait(7, L_CA2, 4, 12, sleep=0, extra=[f"ds_read_b128 v[24:27], v19 offset:{L_MX}", f"ds_read_b128 v[28:31], v19 offset:{L_LX}"] +
         [f"ds_read_b128 v[{40+4*w}:{43+4*w}], v18 offset:{L_K+8192*w}" for w in range(4)])
A("v_max3_f32 v32, v24, v25, v26\nv_max_f32 v32, v32, v27")
for w in range(4): A(f"v_sub_f32 v{24+w}, v{24+w}, v32")
for w in range(4): A(f"v_mul_f32 v{24+w}, s43, v{24+w}")
for w in range(4): A(f"v_exp_f32 v{24+w}, v{24+w}")
for k in range(4): A(f"v_mul_f32 v{36+k}, v24, v{40+k}")
for w in range(1, 4):
    for k in range(4): A(f"v_fmac_f32 v{36+k}, v{24+w}, v{40+4*w+k}")
tag_insert(36, 4)
A("buffer_store_dwordx4 v[36:39], v20, s[36:39], s58 offen sc1")
A("v_mul_f32 v33, v24, v28")
for w in range(1, 4): A(f"v_fmac_f32 v33, v{24+w}, v{28+w}")
tag_insert(32, 4)
A("s_mov_b32 exec_lo, 1\ns_mov_b32 exec_hi, 1")
A("buffer_store_dwordx4 v[32:35], v21, s[36:39], s59 offen sc1")
A("s_cmp_lg_u32 s44, 3\ns_cbranch_scc1 L_A_nohint")
A(f"s_mov_b32 exec_lo, {'0xc000c000' if P['h2trig'] >= 0 else '0xffff' if P['h2share'] else '-1'}\ns_mov_b32 exec_hi, 0")
A(f"buffer_store_byte v{VT}, v1, s[36:39], s47 offen sc1")
A("L_A_nohint:")
stamp(5)
if P["stamps"]:
    A("L_stamps:")
    A("s_mov_b64 exec, 1\ns_waitcnt lgkmcnt(0)")
    srd(36, 26, WS_USED)
    A(f"s_lshl_b32 s46, s2, 4\ns_add_u32 s46, s46, s3\ns_lshl_b32 s46, s46, 5\ns_add_u32 s46, s46, {STAMP}")
    for i in range(8): A(f"v_mov_b32 v{24+i}, s{80+2*i}")
    A("buffer_store_dwordx4 v[24:27], v7, s[36:39], s46 offen\nbuffer_store_dwordx4 v[28:31], v7, s[36:39], s46 offen offset:16")
A("L_end:\ns_endpgm")
A("L_code_end:")
if P["nopub"]: A.L = [l for l in A.L if not (l.startswith("buffer_store_") and l.endswith("sc1"))]
if P["nogather"]: A.L = [l for l in A.L if not (l.startswith("buffer_load_dwordx4") and l.endswith("sc1"))]
if P["nopoll"]: A.L = [l for l in A.L if not (l.startswith("s_load_dword") and l.endswith("glc"))]
A.L = hazard.fix(A.L)
A.footer(124, 96)
A.L.insert(A.L.index(".end_amdhsa_kernel"), "  .amdhsa_float_denorm_mode_32 3")
A.write(OUT)
```

```python
import sys
from asmlib import *
import hazard

P = dict(stamps=0, pol="nt", D=5, DY=6, DF=5, B0=8, eQ=0, eG=0, eA=0, DQ=0, DFY=0, DGY=0, freeA=0, freeB=0, GX=22, h1trig=8, h3s=0, h3sleep=0, h2share=0, ypause=-1, qmask=1, gmask=1, h2trig=-1, hgtrig=-1, sdelay=0, tlb=0, prio=0, h2late=-1, osc=0, spin=400000, prefetch=8, hsleep=1, tfix=0, free=0,
         nopub=0, nogather=0, nopoll=0)
for a in sys.argv[2:]:
    k, v = a.split("=")
    assert k in P, k
    P[k] = v if k == "pol" else int(v)
OUT = sys.argv[1]
LSPIN = P["spin"] * 4
if P["free"]: P["spin"] = 1

EPA, ML, AP, GP, OP, HINT, QP, EPB, STAMP = 0x0, 0x1000, 0x15000, 0x95000, 0xB1000, 0x100000, 0x200000, 0x220000, 0x240000
WS_USED = 0x300000
L_FX, L_TAG, L_CQ, L_CG, L_CK, L_CV, L_CQR, L_CA2, L_CO, L_FH, L_CI, L_EQ, L_EG = 0, 4, 8, 12, 16, 32, 48, 52, 56, 60, 64, 68, 72
L_MX, L_LX = 0x100, 0x180
L_XN, L_OV = 0x400, 0xC00
L_REDQ, L_REDG, L_Q, L_K, L_V = 0xE00, 0x1600, 0x1E00, 0x3000, 0xB000
LDS_BYTES = 0x14400
DPPM = "row_mask:0xf bank_mask:0xf"
LOG2E = 0x3fb8aa3b
SCALE = 0x3db504f3

A = Asm()
A.header(256, 768, LDS_BYTES)
_uid = [0]
def lab(p):
    _uid[0] += 1
    return f"L_{p}_{_uid[0]}"
def stamp(i):
    if P["stamps"]: A(f"s_memrealtime s[{80+2*i}:{81+2*i}]")
def srd(d, base, size):
    A(f"s_mov_b32 s{d}, s{base}\ns_mov_b32 s{d+1}, s{base+1}\ns_mov_b32 s{d+2}, {size:#x}\ns_mov_b32 s{d+3}, 0x20000")
def lds_wait(vaddr, off, val, vt, sleep=1, extra=()):
    l = lab("lw"); e = lab("lwd")
    A(f"s_mov_b32 s60, {LSPIN}")
    A(f"{l}:\nds_read_b32 v{vt}, v{vaddr} offset:{off}")
    for x in extra: A(x)
    A(f"s_waitcnt lgkmcnt(0)\nv_readfirstlane_b32 s61, v{vt}")
    A(f"s_cmp_ge_u32 s61, {val}\ns_cbranch_scc1 {e}")
    if sleep: A(f"s_sleep {sleep}")
    A(f"s_sub_u32 s60, s60, 1\ns_cmp_lg_u32 s60, 0\ns_cbranch_scc1 {l}\n{e}:")
VT = 11
def hint_wait(loads, wide=None):
    l = lab("hw"); e = lab("hwd")
    A("s_and_b32 s56, s31, 0xff\ns_mul_i32 s56, s56, 0x01010101")
    A(f"s_mov_b32 s60, {P['spin']}")
    A(f"{l}:")
    regs = []
    if wide is not None:
        b, o = loads[-1]; loads = loads[:-1]
        A(f"s_load_dwordx2 s[68:69], s[{b}:{b+1}], {o} glc"); regs += [68, 69]
    for i, (b, o) in enumerate(loads):
        A(f"s_load_dword s{64+i}, s[{b}:{b+1}], {o} glc"); regs.append(64 + i)
    A("s_waitcnt lgkmcnt(0)")
    for i, r in enumerate(regs):
        A(f"s_xor_b32 s{r}, s{r}, s56")
        if i: A(f"s_or_b32 s{regs[0]}, s{regs[0]}, s{r}")
    A(f"s_cbranch_scc0 {e}")
    if P["hsleep"]: A(f"s_sleep {P['hsleep']}")
    A(f"s_sub_u32 s60, s60, 1\ns_cmp_lg_u32 s60, 0\ns_cbranch_scc1 {l}\n{e}:")
def tag_insert(vreg, n):
    for k in range(n): A(f"v_perm_b32 v{vreg+k}, v{vreg+k}, v{VT}, s{52+(k&3)}")
def tag_check(bases, vt0, vt1, vacc):
    first = True
    for b in bases:
        A(f"v_perm_b32 v{vt0}, v{b+1}, v{b}, s50\nv_perm_b32 v{vt1}, v{b+3}, v{b+2}, s51")
        if first:
            A(f"v_bitop3_b32 v{vacc}, v{vt0}, v{vt1}, v{VT} bitop3:0x56"); first = False
        else:
            A(f"v_bitop3_b32 v{vt0}, v{vt0}, v{vt1}, v{VT} bitop3:0x56\nv_or_b32 v{vacc}, v{vacc}, v{vt0}")
def gather_loop(loads, bases, vt0, vt1, vacc, sleep=0, issued=False):
    l = lab("gl"); e = lab("gld"); c = lab("glc")
    A(f"s_mov_b32 s60, {P['spin']}")
    if issued: A(f"s_branch {c}")
    A(f"{l}:")
    for x in loads: A(x)
    A(f"{c}:")
    n = len(bases)
    for i, b in enumerate(bases):
        A(f"s_waitcnt vmcnt({n-1-i})")
        for k in range(4): A(f"v_xor_b32 v{b+k}, s{74+k}, v{b+k}")
        if i == 0:
            A(f"v_or3_b32 v{vacc}, v{b}, v{b+1}, v{b+2}\nv_or_b32 v{vacc}, v{vacc}, v{b+3}")
        else:
            A(f"v_or3_b32 v{vacc}, v{vacc}, v{b}, v{b+1}\nv_or3_b32 v{vacc}, v{vacc}, v{b+2}, v{b+3}")
    A(f"v_and_b32 v{vacc}, 0xff, v{vacc}")
    A(f"v_cmp_ne_u32 vcc, 0, v{vacc}")
    A(f"s_and_b64 exec, exec, vcc\ns_cbranch_scc0 {e}")
    if sleep: A(f"s_sleep {sleep}")
    A(f"s_sub_u32 s60, s60, 1\ns_cmp_lg_u32 s60, 0\ns_cbranch_scc1 {l}\n{e}:")
    A("s_mov_b64 exec, -1")
def swapadd(v, t, which, op="v_add_f32"):
    A(f"v_mov_b32 v{t}, v{v}\nv_permlane{which}_swap_b32 v{t}, v{v}\n{op} v{v}, v{v}, v{t}")
def swapadd_n(v, t, n, which, op="v_add_f32"):
    for k in range(n): A(f"v_mov_b32 v{t+k}, v{v+k}")
    for k in range(n): A(f"v_permlane{which}_swap_b32 v{t+k}, v{v+k}")
    for k in range(n): A(f"{op} v{v+k}, v{v+k}, v{t+k}")
def allsum(v, t):
    for m in ("quad_perm:[1,0,3,2]", "quad_perm:[2,3,0,1]", "row_half_mirror", "row_mirror"):
        A(f"v_add_f32_dpp v{v}, v{v}, v{v} {m} {DPPM}")
    swapadd(v, t, 16); swapadd(v, t, 32)
def bf16r(v):
    A(f"v_cvt_pk_bf16_f32 v{v}, v{v}, v{v}\nv_lshlrev_b32 v{v}, 16, v{v}")
def lds_inc(off, wait=True, va=7):
    A("s_mov_b64 exec, 1" + ("\ns_waitcnt lgkmcnt(0)" if wait else "") + f"\nds_add_u32 v{va}, v15 offset:{off}\ns_mov_b64 exec, -1")
def finish():
    A("s_branch L_stamps" if P["stamps"] else "s_endpgm")
def common_regs():
    srd(36, 26, WS_USED)
    for k in range(4): A(f"s_mov_b32 s{52+k}, {0x07060500+k:#x}")
def tag_bytes():
    A("s_and_b32 s74, s31, 0xff\ns_bfe_u32 s75, s31, 0x80008\ns_bfe_u32 s76, s31, 0x80010\ns_lshr_b32 s77, s31, 24")
def get_tag():
    A(f"ds_read_b32 v{VT}, v7 offset:{L_TAG}\ns_waitcnt lgkmcnt(0)\nv_readfirstlane_b32 s31, v{VT}")
def gate():
    A("s_barrier"); get_tag(); tag_bytes()
def own_hint_base(extra=0):
    A(f"s_lshl_b32 s62, s2, 12\ns_add_u32 s62, s62, {HINT}")
    if extra is None: A("s_add_u32 s62, s62, s61")
    elif extra: A(f"s_add_u32 s62, s62, {extra}")
    A("s_add_u32 s62, s26, s62\ns_addc_u32 s63, s27, 0")
pol = P["pol"]
D = P["D"]; DF = P["DF"]
XPQ, XPG, SEL, OPB, ACC, QW, FW = 16, 20, 32, 40, 48, 52, 52
DY = P["DY"]; B0 = P["B0"]
def sync0():
    A("s_waitcnt lgkmcnt(0)\ns_barrier")
def build_op(dst, xp, t):
    for d in range(4):
        A(f"v_perm_b32 v{dst+d}, v{xp+(t>>1)}, v{xp+(t>>1)}, v{SEL+2*d+(t&1)}")
def mfma(op, w, first):
    A(f"v_mfma_f32_16x16x32_bf16 v[{ACC}:{ACC+3}], v[{op}:{op+3}], v[{w}:{w+3}], {'0' if first else f'v[{ACC}:{ACC+3}]'}")
def red_write(base, cnt):
    A("s_mov_b32 exec_lo, 0x00ff00ff\ns_mov_b32 exec_hi, 0xff00ff00")
    A(f"ds_write_b128 v1, v[{ACC}:{ACC+3}] offset:{base}")
    lds_inc(cnt, wait=False)

A("s_cmp_ge_u32 s2, 256\ns_cbranch_scc1 L_end")
A("s_load_dwordx16 s[4:19], s[0:1], 0\ns_load_dwordx8 s[20:27], s[0:1], 64")
A("v_lshrrev_b32 v1, 6, v0\nv_and_b32 v0, 63, v0\nv_readfirstlane_b32 s3, v1")
A("v_mov_b32 v7, 0\nv_mov_b32 v15, 1\ns_add_u32 s3, s3, 12\ns_and_b32 s3, s3, 15")
if P["stamps"]:
    for i in range(1, 8): A(f"s_mov_b32 s{80+2*i}, 0")
stamp(0)
if P["tfix"]: A("s_memrealtime s[94:95]")
A("s_and_b32 s28, s2, 7\ns_lshr_b32 s29, s2, 3\ns_lshr_b32 s30, s2, 4\ns_and_b32 s44, s3, 3")
A("v_lshrrev_b32 v2, 3, v0\nv_and_b32 v3, 7, v0\ns_mov_b32 s35, 0x20000\ns_mov_b32 s43, 0x20000")
A("s_cmp_lt_u32 s3, 4\ns_cbranch_scc1 L_S")
A("s_cmp_eq_u32 s3, 12\ns_cbranch_scc1 L_x")
A("s_cmp_lg_u32 s3, 13\ns_cbranch_scc1 L_other")
if P["prefetch"]:
    A("s_getpc_b64 s[40:41]\nL_pc:")
    if P["prefetch"] == 1:
        A(f"s_mov_b32 s42, L_code_end-L_pc\nv_lshlrev_b32 v4, 7, v0\ns_movk_i32 s46, 0x2000")
        A("buffer_load_dword v40, v4, s[40:43], 0 offen\nbuffer_load_dword v40, v4, s[40:43], s46 offen")
    else:
        n = P["prefetch"]
        A(f"s_mov_b32 s42, L_code_end-L_pc\nv_lshlrev_b32 v4, 7, v0\ns_lshl_b32 s46, s29, 9\ns_mov_b64 exec, {(1 << n) - 1}")
        A("buffer_load_dword v40, v4, s[40:43], s46 offen\ns_mov_b64 exec, -1")
A("s_branch L_other")
A("L_x:")
A("s_setprio 3")
A("v_lshlrev_b32 v5, 5, v0\ns_movk_i32 s42, 2048")
A("s_waitcnt lgkmcnt(0)\ns_mov_b32 s40, s4\ns_mov_b32 s41, s5")
A("buffer_load_dwordx4 v[16:19], v5, s[40:43], 0 offen\nbuffer_load_dwordx4 v[20:23], v5, s[40:43], 0 offen offset:16")
A("s_branch L_ln")
A("L_S:")
A("s_setprio 3")
A("s_and_b32 s45, s29, 3\ns_lshl_b32 s48, s45, 2\ns_add_u32 s48, s48, s44\ns_lshr_b32 s47, s29, 2")
A("s_lshr_b32 s46, s29, 4\ns_lshl_b32 s46, s46, 2\ns_add_u32 s45, s45, s46\ns_lshl_b32 s45, s45, 1\ns_and_b32 s46, s44, 1\ns_add_u32 s45, s45, s46")
A("s_lshl_b32 s46, s44, 1\ns_or_b32 s46, s46, 3\ns_and_b32 s49, s47, 3\ns_cmp_eq_u32 s49, 3\ns_cselect_b32 s48, s45, s48\ns_cselect_b32 s47, s46, s47")
A("s_lshl_b32 s48, s48, 6\ns_lshl_b32 s46, s28, 3\ns_add_u32 s47, s47, s46\ns_lshl_b32 s47, s47, 7")
A(f"s_lshl_b32 s46, s48, 13\ns_add_u32 s60, s47, s46\ns_mov_b32 s38, {8<<20:#x}\ns_mov_b32 s39, 0x20000")
A("v_lshlrev_b32 v4, 16, v2\nv_lshl_add_u32 v4, v3, 4, v4")
A("s_waitcnt lgkmcnt(0)")
A("s_mov_b32 s36, s10\ns_mov_b32 s37, s11")
def q_issue(t):
    def f():
        A(f"buffer_load_dwordx4 v[{QW+4*t}:{QW+4*t+3}], v4, s[36:39], s60 offen {pol}")
        if t < 7: A("s_add_u32 s60, s60, 0x2000")
    return f
if not P["sdelay"]:
    for t in range(B0): q_issue(t)()
    stamp(1)
A("s_lshr_b32 s46, s30, 1\ns_add_u32 s47, s46, 1\ns_cmp_eq_u32 s47, 7\ns_cselect_b32 s47, 0, s47")
A("s_cmp_ge_u32 s44, 2\ns_cselect_b32 s46, s47, s46\ns_cselect_b32 s32, s18, s16\ns_cselect_b32 s33, s19, s17")
A("s_mul_i32 s47, s28, 7\ns_add_u32 s46, s46, s47\ns_lshl_b32 s49, s46, 7")
A(f"s_cmp_ge_u32 s30, 14\ns_cselect_b32 s34, 0, {7<<20:#x}")
GX = P["GX"]; GY = 32 - GX
assert GX % 2 == 0 and GX <= 24
A("s_and_b32 s45, s30, 1\ns_lshl_b32 s45, s45, 1\ns_and_b32 s46, s44, 1\ns_add_u32 s45, s45, s46")
A("s_lshl_b32 s56, s28, 2\ns_lshr_b32 s46, s30, 2\ns_add_u32 s56, s56, s46")
A("s_and_b32 s46, s30, 3\ns_lshl_b32 s57, s46, 9\ns_lshl_b32 s46, s44, 7\ns_add_u32 s57, s57, s46")
if P["sdelay"]:
    for t in range(B0): q_issue(t)()
    stamp(1)
A("s_bitcmp1_b32 s29, 0\ns_cbranch_scc1 L_SY")

def post_burst(ng, D):
    A("v_and_b32 v16, 1, v3\nv_cmp_eq_u32 vcc, 1, v16")
    A("v_mov_b32 v16, 0x0c0c0100\nv_mov_b32 v17, 0x01000c0c\nv_cndmask_b32 v16, v16, v17, vcc")
    A("v_mov_b32 v17, 0x0c0c0302\nv_mov_b32 v18, 0x03020c0c\nv_cndmask_b32 v17, v17, v18, vcc")
    A("v_lshrrev_b32 v18, 1, v3\nv_mov_b32 v19, 0x0c0c0c0c")
    for d in range(4):
        A(f"v_cmp_eq_u32 vcc, {d}, v18")
        A(f"v_cndmask_b32 v{SEL+2*d}, v19, v16, vcc\nv_cndmask_b32 v{SEL+2*d+1}, v19, v17, vcc")
    A("v_bfe_u32 v16, v0, 4, 1\nv_lshl_add_u32 v16, v3, 1, v16\nv_lshrrev_b32 v1, 5, v0\nv_lshlrev_b32 v1, 8, v1\nv_lshl_add_u32 v1, v16, 4, v1")
    A("s_lshl_b32 s46, s44, 9\nv_add_u32 v1, s46, v1")
    A(f"s_lshl_b32 s48, s48, 1\ns_lshl_b32 s59, s59, 1\ns_add_u32 s59, s59, {L_XN}\nv_lshlrev_b32 v{OPB}, 4, v2\nv_mul_u32_u24 v{OPB+1}, {2*ng}, v2\nv_add_u32 v{OPB+1}, s59, v{OPB+1}\nv_add_u32 v{OPB}, s48, v{OPB}")
    A(f"v_mul_u32_u24 v5, {ng*7168}, v2\nv_lshl_add_u32 v5, v3, 4, v5")
    A("s_barrier")
    stamp(2)
    A(f"ds_read_b128 v[{XPQ}:{XPQ+3}], v{OPB} offset:{L_XN}")
    for g in range(0, ng // 2, 2): A(f"ds_read2_b32 v[{XPG+g}:{XPG+g+1}], v{OPB+1} offset0:{g} offset1:{g+1}")
    A("s_waitcnt lgkmcnt(0)")

def run_stream(seq, pre):
    n = len(seq); nextp = 0
    for k in range(pre, n):
        dd = seq[k][2]
        while nextp < k - dd:
            if seq[nextp][1]:
                A(f"s_waitcnt vmcnt({k-1-nextp})"); seq[nextp][1]()
            nextp += 1
        A(f"s_waitcnt vmcnt({dd-1})")
        seq[k][0]()
        while nextp <= k - dd:
            if seq[nextp][1]: seq[nextp][1]()
            nextp += 1
    while nextp < n:
        if seq[nextp][1]:
            A(f"s_waitcnt vmcnt({n-1-nextp})"); seq[nextp][1]()
        nextp += 1
def q_proc(t):
    def f():
        build_op(OPB + 4 * (t & 1), XPQ, t)
        mfma(OPB + 4 * (t & 1), QW + 4 * t, t == 0)
        if P["eQ"] and t == 7 - P["eQ"]: lds_inc(L_EQ, wait=False)
        if t == 7:
            red_write(L_REDQ, L_CQ); stamp(3)
    return f
def qseq(d): return [[q_issue(t), q_proc(t), P["DQ"] or d] for t in range(8)]

A(f"s_mul_i32 s59, s45, {8*GX}\ns_mul_i32 s47, s59, 7168\ns_add_u32 s47, s47, s49")
def gslot(g): return FW + 4 * (8 + g % 8)
def g_issue(g, n, slot):
    def f():
        A(f"buffer_load_dwordx4 v[{slot}:{slot+3}], v5, s[32:35], s47 offen {pol}")
        if g < n - 1: A("s_add_u32 s47, s47, 7168")
    return f
def g_proc(g, n, slot, first_extra=None):
    def f():
        if first_extra: first_extra()
        build_op(OPB + 4 * (g & 1), XPG, g)
        mfma(OPB + 4 * (g & 1), slot, g == 0)
        if P["eG"] and g == n - 1 - P["eG"]: lds_inc(L_EG, wait=False)
        if n == P["GX"] and g == P["h2late"]: lds_inc(L_EG, wait=False)
        if g == n - 1: g_done()
    return f
def f_issue(t, last):
    def f():
        A(f"buffer_load_dwordx4 v[{FW+4*t}:{FW+4*t+3}], v6, s[40:43], s58 offen offset:{2048*(t&1)} {pol}")
        if t & 1 and t < last: A("s_add_u32 s58, s58, 4096")
    return f
def g_done():
    red_write(L_REDG, L_CG); stamp(4)
def q_done():
    red_write(L_REDQ, L_CQ)
seq = [[g_issue(g, GX, gslot(g)), g_proc(g, GX, gslot(g)), D] for g in range(GX)]
seq += [[f_issue(t, 15), None, DF] for t in range(16)]
for t in range(D): seq[GX+t][2] = D
if P["h2trig"] >= 0: seq[GX+P["h2trig"]][1] = lambda: lds_inc(L_EQ, wait=False)
seq = qseq(D) + seq
A(f"s_mov_b32 s40, s12\ns_mov_b32 s41, s13\ns_mov_b32 s42, {8<<20:#x}\ns_lshl_b32 s58, s56, 18\ns_add_u32 s58, s58, s57")
A("v_lshlrev_b32 v6, 15, v2\nv_lshl_add_u32 v6, v3, 4, v6")
post_burst(GX, D)
run_stream(seq, B0)
A(f"s_mov_b32 s45, {L_CO}\ns_mov_b32 s46, {0 if P['freeA'] else 4}\ns_mov_b32 s49, 0")
A("s_branch L_F")
A("L_SY:")
A("s_lshr_b32 s47, s28, 1\ns_lshl_b32 s47, s47, 23\ns_and_b32 s46, s28, 1\ns_lshl_b32 s46, s46, 4\ns_add_u32 s46, s46, s30\ns_lshl_b32 s46, s46, 15\ns_add_u32 s47, s47, s46")
A(f"s_lshl_b32 s46, s44, 13\ns_add_u32 s58, s47, s46\ns_add_u32 s58, s58, {28672*256}\ns_add_u32 s61, s46, {L_K}")
A("v_lshrrev_b32 v16, 4, v0\nv_and_b32 v17, 15, v0")
A("v_xor_b32 v8, v17, v16\nv_lshlrev_b32 v8, 4, v8\nv_lshl_add_u32 v8, v16, 8, v8")
A("v_xor_b32 v9, 64, v8\nv_xor_b32 v10, 128, v8\nv_xor_b32 v14, 192, v8")
A("v_lshlrev_b32 v12, 1, v16\nv_xor_b32 v12, v17, v12\nv_lshlrev_b32 v12, 4, v12\nv_lshl_add_u32 v12, v16, 8, v12\nv_xor_b32 v13, 128, v12")
A(f"s_mov_b32 s40, s6\ns_mov_b32 s41, s7\ns_mov_b32 s42, {32<<20:#x}")
A(f"s_mul_i32 s59, s45, {8*GY}\ns_add_u32 s59, s59, {32*GX}\ns_mul_i32 s47, s59, 7168\ns_add_u32 s47, s47, s49")
A("s_lshl_b32 s46, s44, 2\nv_mov_b32 v11, s46")
def kv_issue(i):
    def f():
        mat, ii = i // 8, i % 8
        if i == 8: A("s_mov_b32 s40, s8\ns_mov_b32 s41, s9\ns_sub_u32 s58, s58, 8192")
        if ii % 4 == 0:
            A(f"s_add_u32 m0, s61, {(L_V - L_K) * mat + 4096 * (ii // 4)}")
            if i: A("s_add_u32 s58, s58, 4096")
        va = (8, 9, 10, 14)[ii & 3] if mat == 0 else (12 + (ii & 1))
        A(f"buffer_load_dwordx4 v{va}, s[40:43], s58 offen offset:{1024*(ii&3)} {pol} lds")
        if i == 15:
            A(f"s_mov_b32 s40, s20\ns_mov_b32 s41, s21\ns_mov_b32 s42, {7<<20:#x}\ns_mul_i32 s58, s56, {112*2048}\ns_add_u32 s58, s58, s57")
    return f
seq = [[kv_issue(i), None, DY] for i in range(16)]
seq[7][1] = lambda: lds_inc(L_CK, wait=False, va=11)
if P["h1trig"] >= 0:
    prev = seq[P["h1trig"]][1]
    def trig():
        if prev: prev()
        lds_inc(L_EQ, wait=False)
    seq[P["h1trig"]][1] = trig
def v_done():
    lds_inc(L_CV, wait=False, va=11); stamp(5)
seq[15][1] = v_done
DGY = P["DGY"] or D
seq += [[g_issue(g, GY, gslot(g)), g_proc(g, GY, gslot(g)), DGY] for g in range(GY)]
if P["ypause"] >= 0:
    k0 = 16 + P["ypause"]
    previ = seq[k0][0]
    def pz():
        v_done()
        lds_wait(7, L_CQR, 4, 4, sleep=1)
        previ()
    seq[k0][0] = pz
    seq[15][1] = None
    seq[k0][2] = 1 + P["ypause"]
DFY = P["DFY"] or DF
seq += [[f_issue(t, 15), None, DFY] for t in range(2, 16)]
for t in range(DGY): seq[16+GY+t][2] = DGY
if P["hgtrig"] >= 0: seq[16+GY+P["hgtrig"]][1] = lambda: lds_inc(L_EG, wait=False)
assert DGY <= 6
seq = qseq(DY) + seq
A(f"v_mul_u32_u24 v6, {14*2048}, v2\nv_lshl_add_u32 v6, v3, 4, v6")
post_burst(GY, DY)
run_stream(seq, B0)
A(f"s_mov_b32 s45, {L_FH}\ns_mov_b32 s46, {0 if P['freeB'] else 1}\ns_mov_b32 s49, 4096")
A("L_F:")
stamp(5) if False else None
A(f"s_lshl_b32 s58, s57, 7\ns_lshl_b32 s48, s56, 7\ns_add_u32 s58, s58, s48\ns_add_u32 s58, s58, s49\ns_add_u32 s58, s58, {OP}")
common_regs(); get_tag()
A("v_mov_b32 v6, s45\nv_lshlrev_b32 v5, 5, v2")
A("v_bfe_u32 v10, v0, 4, 1\nv_lshl_add_u32 v12, v3, 1, v10\nv_and_b32 v13, 7, v12\nv_lshlrev_b32 v13, 4, v13\nv_lshrrev_b32 v12, 3, v12\nv_lshl_add_u32 v13, v12, 13, v13")
for k in range(4): A(f"v_mov_b32 v{ACC+k}, 0")
stamp(6)
if P["prio"] & 2: A("s_setprio 1")
lds_wait(6, 0, "s46", 10, sleep=0, extra=[f"ds_read_b128 v[16:19], v5 offset:{L_OV}", f"ds_read_b128 v[20:23], v5 offset:{L_OV+16}"])
OB = [OPB, OPB + 4, 24, 28]
if P["prio"] & 2: A("s_setprio 3")
A("s_cmp_lg_u32 s49, 0\ns_cbranch_scc1 L_mm2")
build_op(OB[0], 16, 0); build_op(OB[1], 16, 1)
build_op(OB[2], 16, 2)
mfma(OB[0], FW, False)
build_op(OB[3], 16, 3)
mfma(OB[1], FW + 4, False)
A("s_branch L_mm3")
A("L_mm2:")
build_op(OB[2], 16, 2); build_op(OB[3], 16, 3)
A("L_mm3:")
for t in range(2, 16):
    if t + 2 < 16: build_op(OB[(t + 2) & 3], 16, t + 2)
    if 15 - t < max(DF, DFY): A(f"s_waitcnt vmcnt({15-t})")
    mfma(OB[t & 3], FW + 4 * t, False)
for k in range(4): A(f"v_mov_b32 v{24+k}, v{ACC+k}")
for k in range(4): A(f"v_permlane32_swap_b32 v{24+k}, v{ACC+k}")
for k in range(4): A(f"v_add_f32_dpp v{24+k}, v{ACC+k}, v{24+k} row_ror:8 {DPPM}")
tag_insert(24, 4)
A("s_mov_b64 exec, 0x00ff00ff")
A("buffer_store_dwordx4 v[24:27], v13, s[36:39], s58 offen sc1")
lds_inc(L_CI, wait=False)
stamp(7)
finish()
A("L_ln:")
A("s_setprio 3")
A(f"s_add_u32 s62, s26, {EPB}\ns_addc_u32 s63, s27, 0")
A(f"s_load_dword s31, s[26:27], {EPA}\ns_load_dword s57, s[62:63], 0")
A("s_waitcnt vmcnt(0)")
stamp(1)
for k in range(8): A(f"v_lshlrev_b32 v{24+2*k}, 16, v{16+k}\nv_and_b32 v{25+2*k}, 0xffff0000, v{16+k}")
for k in range(8): A(f"v_add_f32 v{40+k}, v{24+2*k}, v{25+2*k}")
for k in range(4): A(f"v_add_f32 v{40+k}, v{40+k}, v{44+k}")
A("v_add_f32 v40, v40, v42\nv_add_f32 v41, v41, v43\nv_add_f32 v6, v40, v41")
allsum(6, 13)
A("v_mul_f32 v6, 0x3a800000, v6")
for k in range(16): A(f"v_sub_f32 v{40+k}, v{24+k}, v6")
A("v_mul_f32 v10, v40, v40\nv_mul_f32 v12, v41, v41")
for k in range(2, 16): A(f"v_fmac_f32 v{10+2*(k&1)}, v{40+k}, v{40+k}")
A("v_add_f32 v10, v10, v12")
allsum(10, 13)
A("v_mul_f32 v10, 0x3a800000, v10")
bf16r(6); bf16r(10)
A("v_add_f32 v10, 0x3727c5ac, v10")
bf16r(10)
A("v_sqrt_f32 v10, v10")
for k in range(16): A(f"v_sub_f32 v{24+k}, v{24+k}, v6")
bf16r(10)
A("v_rcp_f32 v10, v10")
for k in range(8): A(f"v_cvt_pk_bf16_f32 v{16+k}, v{24+2*k}, v{25+2*k}")
for k in range(8):
    a, b = 24 + 2 * k, 25 + 2 * k
    A(f"v_lshlrev_b32 v{a}, 16, v{16+k}\nv_and_b32 v{b}, 0xffff0000, v{16+k}")
    A(f"v_mul_f32 v{a}, v{a}, v10\nv_mul_f32 v{b}, v{b}, v10")
    A(f"v_cvt_pk_bf16_f32 v{16+k}, v{a}, v{b}")
A(f"ds_write_b128 v5, v[16:19] offset:{L_XN}\nds_write_b128 v5, v[20:23] offset:{L_XN+16}")
A("s_waitcnt lgkmcnt(0)")
A("s_mul_i32 s31, s31, 0x9E3779B5\ns_mul_i32 s57, s57, 0x85EBCA6C\ns_add_u32 s31, s31, s57\ns_add_u32 s31, s31, 0x6A09E667")
A(f"v_mov_b32 v{VT}, s31\nds_write_b32 v7, v{VT} offset:{L_TAG}")
stamp(2)
A("s_waitcnt lgkmcnt(0)\ns_barrier")
common_regs(); tag_bytes()
A("s_branch L_H3")
A("L_other:")
A("s_setprio 3" if P["prio"] & 1 else "s_setprio 2")
A("v_lshlrev_b32 v4, 2, v0\ns_mov_b64 exec, 0x7ffffffc\nds_write_b32 v4, v7\ns_mov_b64 exec, -1")
A("s_waitcnt lgkmcnt(0)")
common_regs()
A("v_and_b32 v12, 15, v0\nv_lshlrev_b32 v12, 4, v12\nv_lshrrev_b32 v10, 4, v0\nv_lshl_add_u32 v14, v10, 9, v12")
if P["tlb"]:
    A("s_cmp_lg_u32 s3, 14\ns_cbranch_scc1 L_notlb")
    sh = P["tlb"]
    n = (8 << 20) >> sh
    A(f"v_lshlrev_b32 v4, {sh}, v0\ns_mov_b64 exec, {(1 << min(n, 31)) - 1 if n < 32 else -1}")
    for i, (ptr, size, off) in enumerate(((16, 7 << 20, 0), (18, 7 << 20, 0), (12, 8 << 20, 0), (20, 7 << 20, 0), (26, WS_USED, 0))):
        srd(40, ptr, size)
        A(f"buffer_load_dword v{40+i}, v4, s[40:43], 0 offen")
    A(f"s_lshr_b32 s46, s28, 1\ns_lshl_b32 s46, s46, 23\ns_add_u32 s46, s46, {7<<20}\ns_mov_b64 exec, {(1 << max(1, (1 << 20) >> sh)) - 1}")
    for i, ptr in enumerate((6, 8)):
        srd(40, ptr, 32 << 20)
        A(f"buffer_load_dword v{46+i}, v4, s[40:43], s46 offen")
    A("s_mov_b64 exec, -1\nL_notlb:")
A("s_cmp_lt_u32 s3, 8\ns_cbranch_scc1 L_gath")
A("s_cmp_eq_u32 s3, 14\ns_cbranch_scc1 L_Gred")
A("s_cmp_eq_u32 s3, 15\ns_cbranch_scc1 L_HG")
A("s_lshr_b32 s47, s29, 2\ns_and_b32 s45, s29, 3\ns_lshr_b32 s46, s29, 4\ns_lshl_b32 s46, s46, 2\ns_add_u32 s46, s46, s45")
A("s_and_b32 s49, s47, 3\ns_cmp_eq_u32 s49, 3\ns_cselect_b32 s45, s46, s45\ns_cselect_b32 s47, 3, s47\ns_cselect_b32 s41, -1, 0\ns_cselect_b32 s40, 0xffff, 0")
A("s_lshl_b32 s46, s28, 3\ns_add_u32 s47, s47, s46")
A(f"s_lshl_b32 s58, s47, 11\ns_lshl_b32 s46, s45, 8\ns_add_u32 s58, s58, s46\ns_add_u32 s58, s58, {QP}")
A("v_lshrrev_b32 v5, 5, v0\nv_lshl_add_u32 v12, v5, 13, v12")
A("v_and_b32 v1, 15, v0\nv_lshlrev_b32 v1, 16, v1\nv_lshl_add_u32 v1, v5, 9, v1\nv_bfe_u32 v5, v0, 4, 1\nv_lshl_add_u32 v1, v5, 12, v1")
A(f"s_andn2_b32 s59, s28, 1\ns_lshl_b32 s59, s59, 12\ns_and_b32 s46, s47, 15\ns_lshl_b32 s46, s46, 7\ns_add_u32 s59, s59, s46\ns_add_u32 s59, s59, s45\ns_add_u32 s59, s59, {HINT+8*4096}")
gate()
lds_wait(7, L_CQ, 4, 13, sleep=0, extra=[f"ds_read_b128 v[24:27], v14 offset:{L_REDQ}", f"ds_read_b128 v[28:31], v14 offset:{L_REDQ+256}"])
for k in range(4): A(f"v_add_f32 v{24+k}, v{24+k}, v{28+k}")
swapadd_n(24, 28, 4, 16)
A("s_cmp_eq_u32 s49, 3\ns_cbranch_scc1 L_qsp")
swapadd_n(24, 28, 4, 32)
A("L_qsp:")
if P["qmask"]:
    for k in range(4): A(f"v_add_u32 v{24+k}, 0x80, v{24+k}")
tag_insert(24, 4)
A("s_mov_b32 exec_lo, 0xffff\ns_mov_b32 exec_hi, s40")
A("buffer_store_dwordx4 v[24:27], v12, s[36:39], s58 offen sc1")
if P["h1trig"] < 0:
    A("s_mov_b32 exec_lo, -1\ns_mov_b32 exec_hi, s41")
    A(f"buffer_store_byte v{VT}, v1, s[36:39], s59 offen sc1")
stamp(3)
finish()
A("L_gath:")
A("s_bitcmp1_b32 s29, 0\ns_cbranch_scc0 L_H2")
A("s_branch L_A2")
A("L_HG:")
A("s_bitcmp1_b32 s29, 0\ns_cbranch_scc0 L_idle")
A("s_lshr_b32 s45, s30, 2\ns_mul_i32 s46, s45, 112")
A("v_lshrrev_b32 v8, 1, v0\nv_min_u32 v8, 27, v8\nv_lshl_add_u32 v8, v8, 2, s46")
A("v_lshrrev_b32 v9, 6, v8\nv_and_b32 v8, 63, v8\nv_lshlrev_b32 v8, 2, v8\nv_lshl_add_u32 v8, v9, 11, v8\nv_and_b32 v9, 1, v0\nv_lshl_add_u32 v8, v9, 8, v8")
A(f"s_mul_i32 s58, s28, {7*2048}\ns_add_u32 s58, s58, {GP}")
A("v_mul_u32_u24 v10, 37, v0\nv_lshrrev_b32 v10, 8, v10\nv_add_u32 v10, v10, v0\nv_lshlrev_b32 v10, 2, v10")
A("s_lshl_b32 s61, s45, 1\ns_sub_u32 s61, s61, 1\ns_max_i32 s61, s61, 0\ns_min_u32 s61, s61, 4\ns_lshl_b32 s61, s61, 7\ns_add_u32 s61, s61, 2048")
own_hint_base(None)
gate()
if P["hgtrig"] >= 0: A("s_cmp_lt_u32 s30, 14\ns_cbranch_scc1 L_hgloc")
lds_wait(7, L_EG if P["eG"] else L_CG, 4, 13, sleep=2)
hint_wait([(62, 128 * i) for i in range(4)])
if P["hgtrig"] >= 0:
    A("s_branch L_hggo\nL_hgloc:")
    lds_wait(7, L_EG, 4, 13, sleep=2)
    A("L_hggo:")
stamp(6)
gather_loop([f"buffer_load_dwordx4 v[{24+4*k}:{27+4*k}], v8, s[36:39], s58 offen offset:{(0,1024,512,1536)[k]} sc1" for k in range(4)], [24, 28, 32, 36], 4, 5, 6)
for k in range(8): A(f"v_add_f32 v{24+k}, v{24+k}, v{32+k}")
for k in range(8): A(f"v_add_f32_dpp v{24+k}, v{24+k}, v{24+k} quad_perm:[1,0,3,2] {DPPM}")
A("v_cmp_eq_u32 vcc, 1, v9")
A("v_cndmask_b32 v24, v24, v26, vcc\nv_cndmask_b32 v25, v25, v27, vcc\nv_cndmask_b32 v28, v28, v30, vcc\nv_cndmask_b32 v29, v29, v31, vcc")
A("v_cvt_pk_bf16_f32 v25, v24, v25\nv_cvt_pk_bf16_f32 v29, v28, v29")
A("v_lshlrev_b32 v24, 16, v25\nv_and_b32 v25, 0xffff0000, v25\nv_lshlrev_b32 v28, 16, v29\nv_and_b32 v29, 0xffff0000, v29")
A(f"v_mul_f32 v26, {(LOG2E ^ 0x80000000):#x}, v24\nv_mul_f32 v27, {(LOG2E ^ 0x80000000):#x}, v25\nv_exp_f32 v26, v26\nv_exp_f32 v27, v27")
A("v_add_f32 v26, 1.0, v26\nv_add_f32 v27, 1.0, v27\nv_rcp_f32 v26, v26\nv_rcp_f32 v27, v27\nv_mul_f32 v24, v24, v26\nv_mul_f32 v25, v25, v27")
A("v_cvt_pk_bf16_f32 v25, v24, v25\nv_lshlrev_b32 v24, 16, v25\nv_and_b32 v25, 0xffff0000, v25")
A("v_mul_f32 v24, v24, v28\nv_mul_f32 v25, v25, v29\nv_cvt_pk_bf16_f32 v24, v24, v25")
A("s_mov_b32 exec_hi, 0x00ffffff")
A(f"ds_write_b32 v10, v24 offset:{L_OV+4}")
lds_inc(L_FH, wait=False)
stamp(7)
A("L_fin4:")
finish()
A("L_Gred:")
A("s_cmp_ge_u32 s30, 14\ns_cbranch_scc1 L_idle")
A("s_lshr_b32 s45, s30, 1\ns_add_u32 s46, s45, 1\ns_cmp_eq_u32 s46, 7\ns_cselect_b32 s46, 0, s46")
A("s_lshl_b32 s47, s45, 11\ns_lshl_b32 s46, s46, 11\ns_add_u32 s46, s46, 1024")
A("v_mov_b32 v13, s47\nv_mov_b32 v5, s46\nv_cmp_le_u32 vcc, 32, v0\nv_cndmask_b32 v13, v13, v5, vcc\nv_add_u32 v13, v13, v12")
A("s_and_b32 s46, s29, 1\ns_lshl_b32 s46, s46, 1\ns_and_b32 s47, s30, 1\ns_add_u32 s46, s46, s47")
A(f"s_mul_i32 s58, s28, {7*2048}\ns_lshl_b32 s47, s46, 8\ns_add_u32 s58, s58, s47\ns_add_u32 s58, s58, {GP}")
A("v_and_b32 v1, 15, v0\nv_lshlrev_b32 v1, 16, v1\nv_bfe_u32 v5, v0, 4, 1\nv_mul_u32_u24 v5, 896, v5\nv_sub_u32 v1, v1, v5\nv_add_u32 v1, 896, v1")
A(f"s_lshl_b32 s59, s28, 12\ns_lshl_b32 s47, s45, 7\ns_add_u32 s59, s59, s47\ns_add_u32 s59, s59, s46\ns_add_u32 s59, s59, {HINT+8*4096+2048+128-896}")
A("s_mov_b32 s40, 0xc000" if P["hgtrig"] >= 0 else "s_cmp_eq_u32 s45, 6\ns_cselect_b32 s40, -1, 0xffff")
gate()
if P["eG"]:
    lds_wait(7, L_EG, 4, 5, sleep=1)
    A("s_mov_b32 exec_lo, s40\ns_mov_b32 exec_hi, 0")
    A(f"buffer_store_byte v{VT}, v1, s[36:39], s59 offen sc1")
    A("s_mov_b64 exec, -1")
lds_wait(7, L_CG, 1, 5, sleep=2)
lds_wait(7, L_CG, 4, 5, sleep=0, extra=[f"ds_read_b128 v[24:27], v14 offset:{L_REDG}", f"ds_read_b128 v[28:31], v14 offset:{L_REDG+256}"])
for k in range(4): A(f"v_add_f32 v{24+k}, v{24+k}, v{28+k}")
swapadd_n(24, 28, 4, 16)
if P["gmask"]:
    for k in range(4): A(f"v_add_u32 v{24+k}, 0x80, v{24+k}")
tag_insert(24, 4)
A("s_mov_b32 exec_lo, 0xffff\ns_mov_b32 exec_hi, 0xffff")
A("buffer_store_dwordx4 v[24:27], v13, s[36:39], s58 offen sc1")
if not P["eG"]:
    A("s_mov_b32 exec_lo, s40\ns_mov_b32 exec_hi, 0")
    A(f"buffer_store_byte v{VT}, v1, s[36:39], s59 offen sc1")
stamp(6)
A("L_fin5:")
finish()
A("L_H2:")
A("s_lshl_b32 s45, s28, 2\ns_lshr_b32 s46, s30, 2\ns_add_u32 s45, s45, s46")
A(f"s_lshl_b32 s58, s45, 14\ns_lshl_b32 s46, s44, 7\ns_add_u32 s58, s58, s46\ns_add_u32 s58, s58, {AP}")
A("s_add_u32 s40, s58, 4096\ns_add_u32 s41, s58, 8192\ns_add_u32 s42, s58, 12288")
A(f"s_lshl_b32 s47, s45, 9\ns_add_u32 s47, s47, {ML}")
A("v_lshlrev_b32 v8, 9, v2\nv_lshl_add_u32 v8, v3, 4, v8\nv_lshlrev_b32 v9, 4, v2")
A("s_lshl_b32 s46, s44, 6\nv_lshlrev_b32 v10, 1, v10\nv_lshl_add_u32 v10, v3, 3, v10\nv_add_u32 v10, s46, v10")
A("s_lshl_b32 s61, s44, 8")
if P["h2share"]: A("s_and_b32 s46, s28, 1\ns_lshl_b32 s46, s46, 12\ns_sub_u32 s61, s61, s46")
own_hint_base(None)
gate()
if P["h2trig"] >= 0:
    A("s_cmp_lt_u32 s30, 14\ns_cbranch_scc1 L_h2loc")
if P["h2late"] >= 0: lds_wait(7, L_EG, 1, 12, sleep=4)
hint_wait([(62, 0), (62, 128)])
lds_inc(L_CQR, wait=False)
lds_wait(7, L_CQR, 4, 12, sleep=1)
if P["h2trig"] >= 0:
    A("s_branch L_h2go\nL_h2loc:")
    lds_wait(7, L_EQ, 4, 12, sleep=2)
    A("L_h2go:")
stamp(4)
gather_loop([f"buffer_load_dwordx4 v[{24+4*k}:{27+4*k}], v9, s[36:39], s47 offen offset:{128*k} sc1" for k in range(4)] +
            [f"buffer_load_dwordx4 v[{40+4*k}:{43+4*k}], v8, s[36:39], s{(58,40,41,42)[k]} offen sc1" for k in range(4)],
            [24, 28, 32, 36, 40, 44, 48, 52], 12, 13, 14)
A("v_max3_f32 v12, v24, v28, v32\nv_max_f32 v12, v12, v36")
A(f"v_max_f32_dpp v12, v12, v12 row_ror:8 {DPPM}")
swapadd(12, 13, 16, "v_max_f32"); swapadd(12, 13, 32, "v_max_f32")
A(f"s_mov_b32 s61, {LOG2E:#x}")
for k in range(4): A(f"v_sub_f32 v{24+4*k}, v{24+4*k}, v12")
for k in range(4): A(f"v_mul_f32 v{24+4*k}, s61, v{24+4*k}")
for k in range(4): A(f"v_exp_f32 v{24+4*k}, v{24+4*k}")
A("v_mul_f32 v56, v24, v25")
for e in range(4): A(f"v_mul_f32 v{57+e}, v24, v{40+e}")
for k in range(1, 4):
    A(f"v_fmac_f32 v56, v{24+4*k}, v{25+4*k}")
    for e in range(4): A(f"v_fmac_f32 v{57+e}, v{24+4*k}, v{40+4*k+e}")
for k in range(5): A(f"v_add_f32_dpp v{56+k}, v{56+k}, v{56+k} row_ror:8 {DPPM}")
A("v_mov_b32 v62, v56")
A("v_permlane16_swap_b32 v57, v58\nv_permlane16_swap_b32 v59, v60\nv_permlane16_swap_b32 v62, v56")
A("v_add_f32 v56, v56, v62\nv_add_f32 v57, v57, v58\nv_add_f32 v59, v59, v60\nv_mov_b32 v62, v56")
A("v_permlane32_swap_b32 v57, v59\nv_permlane32_swap_b32 v62, v56")
A("v_add_f32 v56, v56, v62\nv_rcp_f32 v56, v56\nv_add_f32 v57, v57, v59")
A("v_mul_f32 v57, v57, v56\nv_cvt_pk_bf16_f32 v57, v57, v57")
A(f"ds_write_b16 v10, v57 offset:{L_OV}")
lds_inc(L_CO, wait=False)
stamp(5)
finish()
A("L_H3:")
A("s_cmp_lt_u32 s29, 28\ns_cbranch_scc1 L_noep")
A("s_lshl_b32 s45, s28, 2\ns_add_u32 s45, s45, s29\ns_sub_u32 s45, s45, 28")
srd(40, 4, 2048)
A("s_lshl_b32 s46, s45, 6\nv_bfe_u32 v4, v0, 4, 1\nv_lshlrev_b32 v4, 2, v4\nv_lshl_add_u32 v4, v3, 3, v4\nbuffer_load_dword v8, v4, s[40:43], s46 offen")
A(f"s_lshl_b32 s59, s45, 13\ns_add_u32 s59, s59, {OP}\ns_add_u32 s58, s59, 4096\nv_lshlrev_b32 v14, 4, v0")
A("s_waitcnt vmcnt(0)")
srd(40, 22, 2048)
A("v_lshlrev_b32 v16, 16, v8\nv_and_b32 v17, 0xffff0000, v8")
lds_wait(7, L_CI, 4, 5, sleep=1)
if P["h3sleep"]: A(f"s_sleep {P['h3sleep']}")
if P["h3s"]:
    n = P["h3s"]
    A("s_add_u32 s62, s26, s59\ns_addc_u32 s63, s27, 0")
    A(f"s_mov_b32 s60, {P['spin']}\nL_h3s:")
    slots = [(i * 64) // n + (i % 3) for i in range(n)]
    for i, sl in enumerate(slots): A(f"s_load_dword s{64+i}, s[62:63], {128*sl} glc")
    A("s_waitcnt lgkmcnt(0)")
    for i in range(n):
        A(f"s_xor_b32 s{64+i}, s{64+i}, s31")
        if i: A(f"s_or_b32 s64, s64, s{64+i}")
    A("s_and_b32 s64, s64, 0xff\ns_cbranch_scc0 L_h3sd")
    A("s_sub_u32 s60, s60, 1\ns_cmp_lg_u32 s60, 0\ns_cbranch_scc1 L_h3s\nL_h3sd:")
gather_loop([f"buffer_load_dwordx4 v[{24+4*k}:{27+4*k}], v14, s[36:39], s{59-k//4} offen offset:{1024*(k%4)} sc1" for k in range(8)], [24+4*k for k in range(8)], 5, 6, 10)
stamp(6)
for h in (0, 16):
    for k in range(4): A(f"v_add_f32 v{24+h+k}, v{24+h+k}, v{28+h+k}\nv_add_f32 v{32+h+k}, v{32+h+k}, v{36+h+k}")
for k in range(4): A(f"v_add_f32 v{24+k}, v{24+k}, v{32+k}\nv_add_f32 v{28+k}, v{40+k}, v{48+k}")
for k in range(4): A(f"v_permlane32_swap_b32 v{24+k}, v{28+k}")
for k in range(4): A(f"v_add_f32 v{28+k}, v{24+k}, v{28+k}")
A("v_permlane16_swap_b32 v28, v30\nv_permlane16_swap_b32 v29, v31")
A("v_add_f32 v28, v28, v30\nv_add_f32 v29, v29, v31")
A(f"v_add_f32_dpp v28, v28, v28 row_ror:8 {DPPM}\nv_add_f32_dpp v29, v29, v29 row_ror:8 {DPPM}")
A("v_cvt_pk_bf16_f32 v28, v28, v29\nv_mov_b32 v30, v28")
A("v_permlane32_swap_b32 v28, v30")
A("v_lshlrev_b32 v32, 16, v28\nv_and_b32 v33, 0xffff0000, v28\nv_add_f32 v32, v32, v16\nv_add_f32 v33, v33, v17")
A("v_lshlrev_b32 v36, 16, v30\nv_cvt_pk_bf16_f32 v28, v32, v33\nv_and_b32 v37, 0xffff0000, v30")
A("v_lshlrev_b32 v32, 16, v28\nv_and_b32 v33, 0xffff0000, v28\nv_add_f32 v32, v32, v36\nv_add_f32 v33, v33, v37")
A("v_cvt_pk_bf16_f32 v28, v32, v33")
OSC = ""
A("s_mov_b64 exec, 0x00ff00ff\nbuffer_store_dword v28, v4, s[40:43], s46 offen")
stamp(7)
A("s_mov_b64 exec, 1")
A("s_cmp_lg_u32 s45, 0\ns_cbranch_scc1 L_noep")
A(f"s_mov_b32 s46, {EPB}\nbuffer_store_dword v{VT}, v7, s[36:39], 0 offen offset:{EPA}{OSC}\nbuffer_store_dword v{VT}, v7, s[36:39], s46 offen{OSC}")
if P["tfix"]:
    A(f"L_tf:\ns_memrealtime s[92:93]\ns_waitcnt lgkmcnt(0)\ns_sub_u32 s46, s92, s94\ns_cmp_lt_u32 s46, {P['tfix']}\ns_cbranch_scc1 L_tf")
A("L_noep:")
finish()
A("L_idle:")
A("s_barrier\ns_endpgm")
KR, VR, QF, S0 = 40, 72, 104, 24
A("L_A2:")
A("s_lshr_b32 s45, s28, 1\ns_and_b32 s46, s28, 1\ns_lshl_b32 s46, s46, 4\ns_add_u32 s46, s46, s30")
A(f"s_lshl_b32 s49, s44, 13\ns_add_u32 s49, s49, {L_K}")
A("v_lshrrev_b32 v4, 4, v0\nv_and_b32 v5, 15, v0\nv_xor_b32 v6, v5, v4\nv_lshlrev_b32 v6, 4, v6")
A("v_lshl_add_u32 v8, v5, 8, v6\nv_add_u32 v8, s49, v8")
A("v_xor_b32 v9, 64, v8\nv_xor_b32 v10, 128, v8\nv_xor_b32 v14, 192, v8")
A("s_lshl_b32 s48, s44, 2\nv_mov_b32 v22, s48")
A("v_lshrrev_b32 v16, 5, v0\ns_lshl_b32 s48, s44, 1\nv_add_u32 v16, s48, v16")
A("v_and_b32 v17, 31, v0\nv_mul_u32_u24 v18, 528, v16\nv_lshl_add_u32 v18, v17, 4, v18\nv_lshlrev_b32 v19, 4, v16")
A("v_lshlrev_b32 v20, 14, v16\nv_lshl_add_u32 v20, v17, 4, v20\nv_lshlrev_b32 v21, 9, v16")
A(f"s_lshl_b32 s48, s45, 8\ns_add_u32 s48, s48, s46\ns_lshl_b32 s58, s48, 9\ns_add_u32 s58, s58, {AP}\ns_lshl_b32 s59, s48, 4\ns_add_u32 s59, s59, {ML}")
A("v_lshlrev_b32 v1, 16, v5\nv_bfe_u32 v13, v0, 4, 1\nv_lshl_add_u32 v1, v13, 12, v1")
A(f"s_lshl_b32 s47, s45, 13\ns_lshr_b32 s48, s46, 2\ns_lshl_b32 s48, s48, 7\ns_add_u32 s47, s47, s48\ns_and_b32 s48, s46, 3\ns_add_u32 s47, s47, s48\ns_add_u32 s47, s47, {HINT}")
A(f"s_lshl_b32 s40, s45, 15\ns_lshl_b32 s48, s44, 13\ns_add_u32 s40, s40, s48\ns_add_u32 s40, s40, {QP}")
A("v_lshl_add_u32 v16, v4, 11, v12")
A("v_lshl_add_u32 v120, v4, 8, v12\nv_add_u32 v120, 7168, v120")
A("v_cmp_eq_u32 vcc, 3, v4\nv_cndmask_b32 v121, 0, 1.0, vcc")
A("v_lshrrev_b32 v17, 1, v4\nv_mul_u32_u24 v17, 272, v17\nv_lshl_add_u32 v17, v13, 7, v17\nv_lshl_add_u32 v17, v5, 3, v17\ns_mul_i32 s61, s44, 544\nv_add_u32 v17, s61, v17")
A("s_lshl_b32 s61, s44, 9")
own_hint_base(None)
A("v_lshrrev_b32 v12, 2, v0")
A("v_and_b32 v13, 7, v12\nv_lshlrev_b32 v13, 1, v13\nv_bfe_u32 v23, v0, 1, 1\nv_xor_b32 v13, v13, v23\nv_lshlrev_b32 v13, 4, v13")
A(f"v_lshl_add_u32 v13, v12, 8, v13\nv_and_b32 v23, 1, v0\nv_lshl_add_u32 v13, v23, 3, v13\ns_add_u32 s48, s49, {L_V-L_K}\nv_add_u32 v13, s48, v13")
A(f"s_mov_b32 s48, {SCALE:#x}\ns_mov_b32 s43, {LOG2E:#x}")
gate()
if P["h1trig"] >= 0:
    lds_wait(7, L_EQ, 4, 12, sleep=1)
else:
    lds_wait(7, L_CQ, 4, 12, sleep=2)
    hint_wait([(62, 128 * i) for i in range(4)], wide=0)
A("s_setprio 3")
stamp(4)
loads = [f"buffer_load_dwordx4 v[{QF}:{QF+3}], v120, s[36:39], s40 offen sc1"] + [f"buffer_load_dwordx4 v[{24+4*k}:{27+4*k}], v16, s[36:39], s40 offen offset:{256*k} sc1" for k in range(4)]
for x in loads: A(x)
lds_wait(22, L_CK, 1, 12, sleep=0)
for T in range(2):
    for t in range(4):
        r = KR + 16 * T + 4 * t
        A(f"ds_read_b128 v[{r}:{r+3}], v{(8,9,10,14)[t]} offset:{4096*T}")
A("v_mul_u32_u24 v10, 272, v3\nv_lshl_add_u32 v10, v4, 4, v10")
A("v_mul_u32_u24 v8, 528, v3\nv_lshl_add_u32 v8, v4, 4, v8\nv_add_u32 v8, s49, v8")
A("v_lshl_add_u32 v9, v3, 4, v22")
stamp(1)
gather_loop(loads, [QF, 24, 28, 32, 36], 4, 5, 6, issued=True)
for k in range(4): A(f"v_mov_b32 v{QF+4+k}, v{QF+k}")
for k in range(4): A(f"v_add_f32 v{24+k}, v{24+k}, v{28+k}")
for k in range(4): A(f"v_permlane16_swap_b32 v{QF+4+k}, v{QF+k}")
for k in range(4): A(f"v_add_f32 v{QF+k}, v{QF+k}, v{QF+4+k}")
for k in range(4): A(f"v_mov_b32 v{QF+4+k}, v{QF+k}")
for k in range(4): A(f"v_add_f32 v{32+k}, v{32+k}, v{36+k}")
for k in range(4): A(f"v_permlane32_swap_b32 v{QF+4+k}, v{QF+k}")
for k in range(4): A(f"v_add_f32 v{QF+k}, v{QF+k}, v{QF+4+k}")
for k in range(4): A(f"v_add_f32 v{24+k}, v{24+k}, v{32+k}")
for k in range(4): A(f"v_fmac_f32 v{24+k}, v121, v{QF+k}")
A("v_cvt_pk_bf16_f32 v24, v24, v25\nv_cvt_pk_bf16_f32 v25, v26, v27")
A(f"ds_write_b64 v17, v[24:25] offset:{L_Q}")
lds_inc(L_CQR, wait=False)
stamp(6)
lds_wait(22, L_CV, 1, 12, sleep=0)
for dt in range(8):
    r = VR + 4 * dt
    if dt: A(f"v_xor_b32 v12, {32*dt}, v13")
    va = 12 if dt else 13
    A(f"ds_read_b64_tr_b16 v[{r}:{r+1}], v{va}\nds_read_b64_tr_b16 v[{r+2}:{r+3}], v{va} offset:4096")
stamp(3)
lds_wait(7, L_CQR, 4, 12, sleep=0, extra=[f"ds_read_b128 v[{QF+4*t}:{QF+4*t+3}], v10 offset:{L_Q+64*t}" for t in range(4)])
stamp(2)
for t in range(4):
    for T in range(2):
        r = KR + 16 * T + 4 * t; d = S0 + 4 * T
        A(f"v_mfma_f32_16x16x32_bf16 v[{d}:{d+3}], v[{r}:{r+3}], v[{QF+4*t}:{QF+4*t+3}], {'0' if t == 0 else f'v[{d}:{d+3}]'}")
for k in range(0, 8, 2): A(f"v_cvt_pk_bf16_f32 v{S0+k+1}, v{S0+k}, v{S0+k+1}")
for k in range(0, 8, 2): A(f"v_lshlrev_b32 v{S0+k}, 16, v{S0+k+1}\nv_and_b32 v{S0+k+1}, 0xffff0000, v{S0+k+1}")
for k in range(8): A(f"v_mul_f32 v{S0+k}, s48, v{S0+k}")
for k in range(0, 8, 2): A(f"v_cvt_pk_bf16_f32 v{S0+k+1}, v{S0+k}, v{S0+k+1}")
for k in range(0, 8, 2): A(f"v_lshlrev_b32 v{S0+k}, 16, v{S0+k+1}\nv_and_b32 v{S0+k+1}, 0xffff0000, v{S0+k+1}")
A("v_max3_f32 v32, v24, v25, v26\nv_max3_f32 v33, v27, v28, v29\nv_max3_f32 v32, v32, v30, v31\nv_max_f32 v32, v32, v33")
swapadd(32, 33, 16, "v_max_f32"); swapadd(32, 33, 32, "v_max_f32")
for k in range(8): A(f"v_sub_f32 v{S0+k}, v{S0+k}, v32")
for k in range(8): A(f"v_mul_f32 v{S0+k}, s43, v{S0+k}")
for k in range(8): A(f"v_exp_f32 v{S0+k}, v{S0+k}")
for k in range(4): A(f"v_cvt_pk_bf16_f32 v{36+k}, v{S0+2*k}, v{S0+2*k+1}")
OD = 40
sums = [f"v_add_f32 v{S0+k}, v{S0+k}, v{S0+4+k}" for k in range(4)] + ["v_add_f32 v24, v24, v26", "v_add_f32 v25, v25, v27", "v_add_f32 v24, v24, v25", "v_mov_b32 v25, v24"]
for dt in range(8):
    A(f"v_mfma_f32_16x16x32_bf16 v[{OD+4*dt}:{OD+4*dt+3}], v[{VR+4*dt}:{VR+4*dt+3}], v[36:39], 0")
    A(sums[dt])
A("s_mov_b32 exec_lo, 0x00ff00ff\ns_mov_b32 exec_hi, 0x00ff00ff")
for dt in range(8): A(f"ds_write_b128 v8, v[{OD+4*dt}:{OD+4*dt+3}] offset:{64*dt}")
A("s_mov_b64 exec, -1")
A("v_permlane16_swap_b32 v25, v24\nv_add_f32 v24, v24, v25")
swapadd(24, 25, 32)
A(f"s_mov_b64 exec, 0xff\nds_write_b32 v9, v32 offset:{L_MX}\nds_write_b32 v9, v24 offset:{L_LX}")
lds_inc(L_CA2, wait=False)
stamp(7)
lds_wait(7, L_CA2, 4, 12, sleep=0, extra=[f"ds_read_b128 v[24:27], v19 offset:{L_MX}", f"ds_read_b128 v[28:31], v19 offset:{L_LX}"] +
         [f"ds_read_b128 v[{40+4*w}:{43+4*w}], v18 offset:{L_K+8192*w}" for w in range(4)])
A("v_max3_f32 v32, v24, v25, v26\nv_max_f32 v32, v32, v27")
for w in range(4): A(f"v_sub_f32 v{24+w}, v{24+w}, v32")
for w in range(4): A(f"v_mul_f32 v{24+w}, s43, v{24+w}")
for w in range(4): A(f"v_exp_f32 v{24+w}, v{24+w}")
for k in range(4): A(f"v_mul_f32 v{36+k}, v24, v{40+k}")
for w in range(1, 4):
    for k in range(4): A(f"v_fmac_f32 v{36+k}, v{24+w}, v{40+4*w+k}")
tag_insert(36, 4)
A("buffer_store_dwordx4 v[36:39], v20, s[36:39], s58 offen sc1")
A("v_mul_f32 v33, v24, v28")
for w in range(1, 4): A(f"v_fmac_f32 v33, v{24+w}, v{28+w}")
tag_insert(32, 4)
A("s_mov_b32 exec_lo, 1\ns_mov_b32 exec_hi, 1")
A("buffer_store_dwordx4 v[32:35], v21, s[36:39], s59 offen sc1")
A("s_cmp_lg_u32 s44, 3\ns_cbranch_scc1 L_A_nohint")
A(f"s_mov_b32 exec_lo, {'0xc000c000' if P['h2trig'] >= 0 else '0xffff' if P['h2share'] else '-1'}\ns_mov_b32 exec_hi, 0")
A(f"buffer_store_byte v{VT}, v1, s[36:39], s47 offen sc1")
A("L_A_nohint:")
stamp(5)
if P["stamps"]:
    A("L_stamps:")
    A("s_mov_b64 exec, 1\ns_waitcnt lgkmcnt(0)")
    srd(36, 26, WS_USED)
    A(f"s_lshl_b32 s46, s2, 4\ns_add_u32 s46, s46, s3\ns_lshl_b32 s46, s46, 5\ns_add_u32 s46, s46, {STAMP}")
    for i in range(8): A(f"v_mov_b32 v{24+i}, s{80+2*i}")
    A("buffer_store_dwordx4 v[24:27], v7, s[36:39], s46 offen\nbuffer_store_dwordx4 v[28:31], v7, s[36:39], s46 offen offset:16")
A("L_end:\ns_endpgm")
A("L_code_end:")
if P["nopub"]: A.L = [l for l in A.L if not (l.startswith("buffer_store_") and l.endswith("sc1"))]
if P["nogather"]: A.L = [l for l in A.L if not (l.startswith("buffer_load_dwordx4") and l.endswith("sc1"))]
if P["nopoll"]: A.L = [l for l in A.L if not (l.startswith("s_load_dword") and l.endswith("glc"))]
A.L = hazard.fix(A.L)
A.footer(124, 96)
A.L.insert(A.L.index(".end_amdhsa_kernel"), "  .amdhsa_float_denorm_mode_32 3")
A.write(OUT)
```
